```python
import torch

def _softmax(x, axis=-1):
    return torch.softmax(x, dim=axis)
def _gelu(x):
    return torch.nn.functional.gelu(x, approximate="tanh")
def _silu(x):
    return torch.nn.functional.silu(x)
def _sigmoid(x):
    return torch.sigmoid(x)
def _layernorm(x, axis=-1, eps=1e-5):
    m = x.mean(dim=axis, keepdim=True)
    v = x.var(dim=axis, keepdim=True, unbiased=False)
    return (x - m) / torch.sqrt(v + eps)
def _scatter_add(tgt, idx, src, axis=0):
    return tgt.clone().index_add_(axis, idx, src)
def _segment_sum(src, seg, n):
    out = torch.zeros((n,) + src.shape[1:], dtype=src.dtype)
    return out.index_add_(0, seg, src)
def _pad(x, pw):
    flat = tuple(v for pair in reversed(pw) for v in pair)
    return torch.nn.functional.pad(x, flat)

kernel_name = 'concat_heads__mha_block_cached__gqa_block_cached__near_ridge'

def setup_inputs():

    _w = (lambda a: (lambda t: t.to(torch.bfloat16) if t.is_floating_point() else t)(torch.as_tensor(a)))
    def _A_setup():
        B, Sq, D = 8, 176, 1024
        H, Sk, Dh = 32, 512, 128
        return {
            "x": _w((lambda *s: torch.randn(*s, dtype=torch.bfloat16) * 0.8)(B, Sq, D)),
            "k_cache": _w((lambda *s: torch.randn(*s, dtype=torch.bfloat16) * 0.8)(B, H, Sk, Dh)),
            "v_cache": _w((lambda *s: torch.randn(*s, dtype=torch.bfloat16) * 0.05)(B, H, Sk, Dh)),
            "wq": _w((lambda *s: torch.randn(*s, dtype=torch.bfloat16) * 0.8)(D, H * Dh) * (D ** -0.5)),
            "wo": _w((lambda *s: torch.randn(*s, dtype=torch.bfloat16) * 0.05)(H * Dh, D) * ((H * Dh) ** -0.5)),
        }
    _A_in = _A_setup()

    def _B_setup():
        B, Sq, D = 8, 176, 1024
        Hq, Hkv, Sk, Dh = 32, 32, 512, 128
        assert Hq % Hkv == 0, (Hq, Hkv)
        return {
            "x": _w((lambda *s: torch.randn(*s, dtype=torch.bfloat16) * 0.8)(B, Sq, D)),
            "k_cache": _w((lambda *s: torch.randn(*s, dtype=torch.bfloat16) * 0.8)(B, Hkv, Sk, Dh)),
            "v_cache": _w((lambda *s: torch.randn(*s, dtype=torch.bfloat16) * 0.05)(B, Hkv, Sk, Dh)),
            "wq": _w((lambda *s: torch.randn(*s, dtype=torch.bfloat16) * 0.8)(D, Hq * Dh) * (D ** -0.5)),
            "wo": _w((lambda *s: torch.randn(*s, dtype=torch.bfloat16) * 0.05)(Hq * Dh, D) * ((Hq * Dh) ** -0.5)),
        }
    _B_in = _B_setup()

    return {
        "A_x": _A_in["x"],
        "A_k_cache": _A_in["k_cache"],
        "A_v_cache": _A_in["v_cache"],
        "A_wq": _A_in["wq"],
        "A_wo": _A_in["wo"],
        "B_x": _B_in["x"],
        "B_k_cache": _B_in["k_cache"],
        "B_v_cache": _B_in["v_cache"],
        "B_wq": _B_in["wq"],
        "B_wo": _B_in["wo"],
    }

def reference(A_x, A_k_cache, A_v_cache, A_wq, A_wo, B_x, B_k_cache, B_v_cache, B_wq, B_wo):
    def _A_ref(x, k_cache, v_cache, wq, wo):
        B, Sq, D = x.shape
        H, Dh = 32, 128
        q = (lambda x, *d: x.permute(*d))((x @ wq).reshape(B, Sq, H, Dh), 0, 2, 1, 3)
        scores = torch.einsum("bhqd,bhkd->bhqk", q, k_cache) * (Dh ** -0.5)
        p = _softmax(scores, axis=-1)
        o = torch.einsum("bhqk,bhkd->bhqd", p, v_cache)
        return (lambda x, *d: x.permute(*d))(o, 0, 2, 1, 3).reshape(B, Sq, H * Dh) @ wo

    def _B_ref(x, k_cache, v_cache, wq, wo):
        B, Sq, D = x.shape
        Hq, Dh = 32, 128
        Hkv = k_cache.shape[1]
        rep = Hq // Hkv
        q = (lambda x, *d: x.permute(*d))((x @ wq).reshape(B, Sq, Hq, Dh), 0, 2, 1, 3)
        k = (lambda x, n, axis: torch.repeat_interleave(x, n, dim=axis))(k_cache, rep, axis=1)
        v = (lambda x, n, axis: torch.repeat_interleave(x, n, dim=axis))(v_cache, rep, axis=1)
        scores = torch.einsum("bhqd,bhkd->bhqk", q, k) * (Dh ** -0.5)
        p = _softmax(scores, axis=-1)
        o = torch.einsum("bhqk,bhkd->bhqd", p, v)
        return (lambda x, *d: x.permute(*d))(o, 0, 2, 1, 3).reshape(B, Sq, Hq * Dh) @ wo

    a = _A_ref(A_x, A_k_cache, A_v_cache, A_wq, A_wo)
    b = _B_ref(B_x, B_k_cache, B_v_cache, B_wq, B_wo)
    return torch.concatenate([a, b], axis=-1)
```

```python
import re

class R:
    __slots__ = ("k", "i", "n")
    def __init__(self, k, i, n=1):
        self.k, self.i, self.n = k, i, n
    def __str__(self):
        return f"{self.k}{self.i}" if self.n == 1 else f"{self.k}[{self.i}:{self.i+self.n-1}]"
    def regs(self):
        return [f"{self.k}{self.i+j}" for j in range(self.n)]
    def __getitem__(self, j):
        if isinstance(j, slice):
            st = j.start or 0
            return R(self.k, self.i + st, j.stop - st)
        assert 0 <= j < self.n
        return R(self.k, self.i + j, 1)
def V(i, n=1): return R("v", i, n)
def A(i, n=1): return R("a", i, n)
def S(i, n=1): return R("s", i, n)

def _regs(x):
    if isinstance(x, R): return x.regs()
    if isinstance(x, str) and x in ("vcc", "m0", "exec", "scc"): return [x]
    return []

class Ins:
    __slots__ = ("text", "kind", "defs", "uses", "tag", "extra", "req_l", "req_v", "pre_nop")
    def __init__(self, text, kind, defs=(), uses=(), tag=None, extra=None):
        self.text, self.kind, self.defs, self.uses, self.tag, self.extra = text, kind, list(defs), list(uses), tag, extra
        self.req_l = None; self.req_v = None; self.pre_nop = 0

TRANS = ("v_exp_f32", "v_rcp_f32", "v_log_f32", "v_rsq_f32", "v_sqrt_f32")

def fmt(x):
    if isinstance(x, float):
        return repr(x)
    if isinstance(x, int):
        return str(x) if -16 <= x <= 64 else hex(x & 0xffffffff)
    return str(x)

def mfma(d, a, b, c):
    return Ins(f"v_mfma_f32_16x16x32_bf16 {d}, {a}, {b}, {fmt(c)}", "mfma", d.regs(), a.regs() + b.regs() + _regs(c),
               extra=dict(d=d.regs(), ab=a.regs() + b.regs(), c=_regs(c)))
def valu(op, d, *src, rmw=False, mods=""):
    kind = "trans" if op in TRANS else "valu"
    uses = [r for s in src for r in _regs(s)]
    if rmw: uses += _regs(d)
    return Ins(f"{op} {d}, " + ", ".join(fmt(s) for s in src) + mods, kind, _regs(d), uses)
def vcmp(op, d, a, b):
    return Ins(f"{op} {d}, {fmt(a)}, {fmt(b)}", "valu", _regs(d), _regs(a) + _regs(b))
def permlane(op, a, b):
    return Ins(f"{op} {a}, {b}", "permlane", a.regs() + b.regs(), a.regs() + b.regs())
def readfirstlane(d, s):
    return Ins(f"v_readfirstlane_b32 {d}, {s}", "rdlane", d.regs(), s.regs())
def accrd(d, s): return Ins(f"v_accvgpr_read_b32 {d}, {s}", "valu", d.regs(), s.regs())
def accwr(d, s): return Ins(f"v_accvgpr_write_b32 {d}, {fmt(s)}", "valu", d.regs(), _regs(s))
def salu(op, d, *src, scc=True):
    defs = _regs(d) + (["scc"] if scc and not op.startswith("s_mov") and not op.startswith("s_cselect") and not op.startswith("s_mul") else [])
    uses = [r for s in src for r in _regs(s)]
    if op.startswith("s_cselect") or op.startswith("s_addc") or op.startswith("s_subb"): uses.append("scc")
    return Ins(f"{op} {d}, " + ", ".join(fmt(s) for s in src), "salu", defs, uses)
def scmp(op, a, b):
    return Ins(f"{op} {fmt(a)}, {fmt(b)}", "salu", ["scc"], _regs(a) + _regs(b))
def sload(d, base, off):
    n = {1: "dword", 2: "dwordx2", 4: "dwordx4", 8: "dwordx8", 16: "dwordx16"}[d.n]
    return Ins(f"s_load_{n} {d}, {base}, {off}", "smem", d.regs(), base.regs())
def ds_read(d, addr, off=0, tr=False):
    op = "ds_read_b64_tr_b16" if tr else {1: "ds_read_b32", 2: "ds_read_b64", 4: "ds_read_b128"}[d.n]
    assert 0 <= off < 65536, off
    return Ins(f"{op} {d}, {addr}" + (f" offset:{off}" if off else ""), "ds_read", d.regs(), addr.regs())
def ds_write(addr, s, off=0):
    op = {1: "ds_write_b32", 2: "ds_write_b64", 4: "ds_write_b128"}[s.n]
    assert 0 <= off < 65536, off
    return Ins(f"{op} {addr}, {s}" + (f" offset:{off}" if off else ""), "ds_write", [], addr.regs() + s.regs())
def bload(d, voff, srd, soff=0, off=0, flags="", tag=None):
    op = {1: "buffer_load_dword", 2: "buffer_load_dwordx2", 4: "buffer_load_dwordx4"}[d.n]
    assert 0 <= off < 4096, off
    return Ins(f"{op} {d}, {voff}, {srd}, {fmt(soff)} offen" + (f" offset:{off}" if off else "") + (" " + flags if flags else ""),
               "vload", d.regs(), voff.regs() + srd.regs() + _regs(soff), tag=tag)
def dma(voff, srd, soff=0, off=0, flags="", tag=None):
    assert 0 <= off < 4096, off
    return Ins(f"buffer_load_dwordx4 {voff}, {srd}, {fmt(soff)} offen" + (f" offset:{off}" if off else "") + (" " + flags if flags else "") + " lds",
               "dma", [], voff.regs() + srd.regs() + _regs(soff) + ["m0"], tag=tag)
def bstore(s, voff, srd, soff=0, off=0, flags="", tag=None):
    op = {1: "buffer_store_dword", 2: "buffer_store_dwordx2", 4: "buffer_store_dwordx4"}[s.n]
    assert 0 <= off < 4096, off
    return Ins(f"{op} {s}, {voff}, {srd}, {fmt(soff)} offen" + (f" offset:{off}" if off else "") + (" " + flags if flags else ""),
               "vstore", [], s.regs() + voff.regs() + srd.regs() + _regs(soff), tag=tag, extra=dict(data=s.regs() if s.n >= 3 else []))
def raw(text, kind="salu", defs=(), uses=(), tag=None):
    return Ins(text, kind, defs, uses, tag=tag)
def nop(n=0): return Ins(f"s_nop {n}", "nop", extra=n + 1)
def barrier(): return Ins("s_barrier", "barrier")
def label(name): return Ins(f"{name}:", "label")
def branch(op, target): return Ins(f"{op} {target}", "branch", [], ["scc"] if "scc" in op else (["vcc"] if "vcc" in op else []))
def wslot(): return Ins("", "wslot")
def wait(vm=None, lgkm=None):
    i = Ins("", "wslot"); i.req_v = vm; i.req_l = lgkm; i.extra = "hard"; return i
def wait_tag(tags, lgkm=None):
    i = Ins("", "wslot"); i.extra = ("tag", list(tags)); i.req_l = lgkm; return i
def comment(t): return Ins(f"; {t}", "label")

class Loop:
    def __init__(self, body, reps=3):
        self.body, self.reps = body, reps

def flatten_trace(prog):
    out = []
    for x in prog:
        if isinstance(x, Loop):
            for _ in range(x.reps): out += flatten_trace(x.body)
        elif isinstance(x, list): out += flatten_trace(x)
        else: out.append(x)
    return out
def flatten_static(prog):
    out = []
    for x in prog:
        if isinstance(x, Loop): out += flatten_static(x.body)
        elif isinstance(x, list): out += flatten_static(x)
        else: out.append(x)
    return out

def _setmin(obj, attr, n):
    cur = getattr(obj, attr)
    setattr(obj, attr, n if cur is None else min(cur, n))

def insert_waits(trace):
    lq = []
    vq = []
    lseq = vseq = 0
    slots = []
    last_tag = {}
    smem_pending = set()
    def apply(slot):
        nonlocal lq, vq
        ins, ls, vs = slot
        if ins.req_l is not None:
            lq = [e for e in lq if e[0] >= ls - ins.req_l]
            if ins.req_l == 0: smem_pending.clear()
        if ins.req_v is not None:
            vq = [e for e in vq if e[0] >= vs - ins.req_v]
    for ins in trace:
        if ins.kind == "wslot":
            if isinstance(ins.extra, tuple) and ins.extra[0] == "tag":
                seqs = [last_tag[t] for t in ins.extra[1] if t in last_tag]
                if seqs:
                    _setmin(ins, "req_v", min(63, vseq - max(seqs) - 1))
            slots.append((ins, lseq, vseq))
            apply(slots[-1])
            continue
        if ins.kind in ("label", "branch"):
            if ins.kind == "branch" or ins.text.endswith(":"): slots = []
            if ins.kind == "label": continue
        touched = set(ins.uses) | set(ins.defs)
        assert not (touched & smem_pending), f"SMEM result used without wait: {ins.text}"
        for q, attr, mx, idx in ((lq, "req_l", 15, 1), (vq, "req_v", 63, 2)):
            need = [e[0] for e in q if touched & e[1]]
            if need:
                s = max(need)
                cand = [sl for sl in slots if sl[idx] > s]
                if cand:
                    sl = cand[-1]
                    _setmin(sl[0], attr, min(mx, sl[idx] - s - 1))
                    apply(sl)
                else:
                    cur = lseq if idx == 1 else vseq
                    _setmin(ins, attr, min(mx, cur - s - 1))
                    apply((ins, lseq, vseq))
        if ins.req_l is not None or ins.req_v is not None:
            apply((ins, lseq, vseq))
        if ins.kind in ("ds_read", "ds_write"):
            lq.append((lseq, set(ins.defs))); lseq += 1
        elif ins.kind in ("vload", "dma", "vstore", "vatomic"):
            vq.append((vseq, set(ins.defs), ins.tag))
            if ins.tag is not None: last_tag[ins.tag] = vseq
            vseq += 1
        elif ins.kind == "smem":
            smem_pending |= set(ins.defs)

def _wait_text(i):
    p = []
    if i.req_v is not None: p.append(f"vmcnt({i.req_v})")
    if i.req_l is not None: p.append(f"lgkmcnt({i.req_l})")
    return "s_waitcnt " + " ".join(p) if p else None

def check_hazards(trace, fix=True, warn=None):
    VAL = ("valu", "trans", "permlane", "rdlane")
    changed = True
    total_fix = 0
    while changed:
        changed = False
        pos = 0
        last = {}
        for ins in trace:
            if ins.kind == "label": continue
            if ins.kind == "wslot":
                if _wait_text(ins): pos += 1
                continue
            p = pos + ins.pre_nop + (1 if _wait_text(ins) else 0)
            need = 0
            def chk(cls, regs, ws):
                nonlocal need
                for r in regs:
                    q = last.get((cls, r))
                    if q is not None:
                        short = ws - (p - q - 1)
                        if short > need: need = short
            k = ins.kind
            vuses = [r for r in ins.uses if r[0] in "va" and r != "vcc"]
            vdefs = [r for r in ins.defs if r[0] in "va" and r != "vcc"]
            suses = [r for r in ins.uses if (r[0] == "s" and r != "scc") or r == "vcc"]
            if k == "mfma":
                chk("valu_w", vuses, 2)
                chk("mfma_d", ins.extra["ab"], 8)
                for r in ins.extra["c"]:
                    q = last.get(("mfma_d", r))
                    if q is not None and last.get(("mfma_dt", r)) != tuple(ins.extra["c"]):
                        short = 6 - (p - q - 1)
                        need = max(need, short)
                if ins.extra["c"] != ins.extra["d"]:
                    chk("mfma_d", ins.extra["d"], 6)
                chk("exec_w", ["exec"], 4)
            if k in VAL:
                chk("mfma_d", vuses + vdefs, 8)
                chk("mfma_c", vdefs, 3)
                chk("store_data", vdefs, 2)
                chk("valu_sw", suses, 2)
                if k != "trans": chk("trans_w", vuses, 1)
                if k == "permlane": chk("valu_w", vuses, 2)
                if k == "rdlane": chk("valu_w", vuses, 1)
            if k in ("ds_read", "ds_write", "vload", "dma", "vstore", "vatomic"):
                chk("mfma_d", vuses + vdefs, 8)
                chk("store_data", vdefs, 1)
                chk("trans_w", vuses, 1)
                if k not in ("ds_read", "ds_write"): chk("valu_sw", suses, 5)
                if k == "dma": chk("m0_w", ["m0"], 1)
            if k in ("salu", "branch"):
                chk("valu_sw", suses, 1)
            if need > 0:
                if not fix: raise RuntimeError(f"hazard before {ins.text}: short {need}")
                ins.pre_nop += need; changed = True; total_fix += 1
                if warn: warn(f"s_nop x{need} inserted before: {ins.text}")
                p += need
            if k == "mfma":
                for r in ins.extra["d"]:
                    last[("mfma_d", r)] = p; last[("mfma_dt", r)] = tuple(ins.extra["d"])
                for r in ins.extra["c"]: last[("mfma_c", r)] = p
            if k in VAL:
                for r in vdefs:
                    last[("valu_w", r)] = p
                    if k == "trans": last[("trans_w", r)] = p
                    else: last.pop(("trans_w", r), None)
                    last.pop(("mfma_d", r), None)
                for r in ins.defs:
                    if (r[0] == "s" and r != "scc") or r == "vcc": last[("valu_sw", r)] = p
                    if r == "exec": last[("exec_w", "exec")] = p
            if k == "salu" and "m0" in ins.defs: last[("m0_w", "m0")] = p
            if k == "vstore":
                for r in ins.extra["data"]: last[("store_data", r)] = p
            pos = p + (ins.extra if k == "nop" else 1)
    return total_fix

def emit(static):
    out = []
    for i in static:
        if i.kind == "wslot":
            t = _wait_text(i)
            if t: out.append("    " + t)
            continue
        t = _wait_text(i)
        if t: out.append("    " + t)
        n = i.pre_nop
        while n > 0:
            k = min(n, 16); out.append(f"    s_nop {k-1}"); n -= k
        out.append(i.text if i.kind == "label" else "    " + i.text)
    return out

def finalize(prog, warn=None):
    tr = flatten_trace(prog)
    insert_waits(tr)
    insert_waits(tr)
    check_hazards(tr, warn=warn)
    return emit(flatten_static(prog))

class Gaps:
    def __init__(self, mfmas):
        self.m = list(mfmas)
        n = len(self.m)
        self.sc = [[] for _ in range(n)]; self.mem = [[] for _ in range(n)]; self.va = [[] for _ in range(n)]
        self.noslot = set()
    def __len__(self): return len(self.m)
    def s(self, g, *ins): self.sc[g] += ins
    def d(self, g, *ins): self.mem[g] += ins
    def v(self, g, *ins): self.va[g] += ins
    def cost(self, g):
        c = 0
        for i in self.mem[g]: c += 12 if i.kind in ("dma", "vload", "vstore") else 4
        for i in self.va[g]: c += 8 if i.kind == "trans" else 4
        return c
    def build(self):
        out = []
        for g, m in enumerate(self.m):
            out.append(m)
            if g not in self.noslot: out.append(wslot())
            out += self.sc[g] + self.mem[g] + self.va[g]
        return out

STAMP_BASE = 64
def stamp(cfg, i):
    if not cfg.get("stamps"): return []
    b = STAMP_BASE + 4 * i
    return [raw(f"s_memtime s[{b}:{b+1}]", "smem", [f"s{b}", f"s{b+1}"]), raw(f"s_memrealtime s[{b+2}:{b+3}]", "smem", [f"s{b+2}", f"s{b+3}"]), wait(lgkm=0)]
def stamp_dump(cfg, n, sWave, region):
    if not cfg.get("stamps"): return []
    o = []
    E = o.append
    E(sload(S(56, 2), S(0, 2), 96)); E(wait(lgkm=0, vm=0))
    E(salu("s_add_u32", S(56), S(56), (128 << 20) + (region << 20))); E(salu("s_addc_u32", S(57), S(57), 0))
    E(salu("s_mov_b32", S(58), 1 << 20)); E(salu("s_mov_b32", S(59), 0x00020000))
    E(salu("s_lshl_b32", S(60), S(2), 2)); E(salu("s_add_u32", S(60), S(60), sWave)); E(salu("s_lshl_b32", S(60), S(60), 7))
    E(valu("v_mov_b32", V(2), 0))
    for i in range(n):
        b = STAMP_BASE + 4 * i
        E(valu("v_mov_b32", V(4), S(b))); E(valu("v_mov_b32", V(5), S(b + 2)))
        E(bstore(V(4, 2), V(2), S(56, 4), S(60), 8 * i))
        E(wait(vm=0))
    return o
```

```python
from asmlib import *
import math, struct

KNAME1 = "qattn_kernel"
HU = 8448
U = 2 * HU
NU = 9
K0_OFF = NU * U
NWQ = 5
QSCALE = math.log2(math.e) / math.sqrt(128.0)
def f32bits(x): return struct.unpack("<I", struct.pack("<f", x))[0]
LMAX = 2.0 ** 16

def wq_unit(j): return (4 + (j + 3) % 5) * U
def wq_cls(f): return f * 2048 + (f >> 1) * 64 + (f & 1) * 8

class K:
    SRD_X = S(4, 4); SRD_WQ = S(8, 4); SRD_K = S(12, 4); SRD_V = S(16, 4); SRD_O = S(20, 4)
    sWave = S(24); sT = S(25); sT2 = S(26); sCnt = S(27); sWqOff = S(28); sXOff = S(29)
    sWqM0 = S(30)
    sRd = S(31); sWr = S(32); sKOff = S(33); sVOff = S(34); sHead = S(35); sScale = S(36, 2); sOOff = S(38); sWqRd = S(39); sWqWr = S(40)
    sKVm = S(41); sWrV = S(42); sWvK = S(43); sWvV = S(3)
    vLane = V(1); t0 = V(2); t1 = V(3); t2 = V(4); t3 = V(5)
    vDWQ = V(6, 4)
    vX = V(10, 3)
    vWb = V(13); vW = V(14)
    vKb = V(15); vK = V(16); vVb = V(17); vV = V(18)
    vDKV = V(19)
    vO = V(20); vDK = V(31); vDV = V(23)
    ONES = V(24, 4)
    RINV = V(28, 3); TM = V(32, 8)
    MREF = 40; LACC = 52
    ACC = 64
    Q = 64
    SP = 112
    OACC = 160
    XB = 0
    WF = 96
    Q1 = 128
    KF = 0
    VF = 32
    @staticmethod
    def acc(dt, qt, NT):
        return V(K.ACC + 8 * ((dt >> 1) * NT + qt) + 4 * (dt & 1), 4)
    @staticmethod
    def xb(buf, qt): return A(K.XB + 12 * buf + 4 * qt, 4)
    @staticmethod
    def wf(f): return A(K.WF + 4 * (f & 7), 4)
    @staticmethod
    def q(s, qt, NT): return V(K.Q + 4 * (s * NT + qt), 4)
    @staticmethod
    def sp(par, qt): return V(K.SP + 24 * par + 8 * qt, 8)
    @staticmethod
    def mref(qt): return V(K.MREF + 4 * qt, 4)
    @staticmethod
    def lacc(qt): return V(K.LACC + 4 * qt, 4)
    @staticmethod
    def oacc(dt, qt, NT): return V(K.OACC + 8 * ((dt >> 1) * NT + qt) + 4 * (dt & 1), 4)
    @staticmethod
    def kf(kt, s): return A(K.KF + 16 * kt + 4 * s, 4)
    @staticmethod
    def vf(dt): return A(K.VF + 4 * dt, 4)

def wread(f, h):
    d = K.wf(f)
    off = h * 512 + (f >> 3) * 256 + ((f >> 1) & 3) * 64 + (f & 1) * 8
    return ds_read(d[2 * h:2 * h + 2], K.vW, off, tr=True)

def wq_pieces(unit_reg_or_off, cfg, tag):
    ops = []
    for p in range(4):
        i, e2 = p >> 1, p & 1
        lit = i * 2056 + e2 * 1024
        if isinstance(unit_reg_or_off, int):
            pre = salu("s_add_u32", "m0", K.sWqM0, unit_reg_or_off + lit)
        else:
            pre = salu("s_add_u32", "m0", unit_reg_or_off, lit)
        ops.append((pre, dma(K.vDWQ[p], K.SRD_WQ, K.sWqOff, 0, cfg["wq_flags"], tag=tag)))
    return ops

def kv_pieces(is_v, lds_off, chunk, ns, cfg, tag, lds_reg=None, soff_reg=None):
    ops = []
    srd_ = K.SRD_V if is_v else K.SRD_K
    for n in ns:
        if lds_reg is None: pre = [salu("s_mov_b32", "m0", lds_off + n * 800)]
        else: pre = [salu("s_add_u32", "m0", lds_reg, lds_off + n * 800)]
        so = soff_reg
        if so is None:
            so = K.sKVm
            if n == ns[0]: pre = [salu("s_mov_b32", K.sKVm, chunk * 8192)] + pre
        ops.append((pre, dma(K.vDKV, srd_, so, n * 256, cfg["kv_flags"], tag=tag)))
    return ops

def NPRE(NT): return 6 if NT == 3 else 7

def qproj_step(j, NT, cfg, dyn, extra_vm=(), load_wq=True, load_x=True, last=False, loopend=None):
    xb = j & 7
    G = Gaps([mfma(K.acc(f, qt, NT), K.wf(f), K.xb(xb, qt), K.acc(f, qt, NT)) for f in range(16) for qt in range(NT)])
    n = len(G)
    sy = 12 * NT - 1
    if NT == 3:
        for f in range(6, 16):
            g = 3 * (f - 6)
            G.d(g, wread(f, 0)); G.d(g + 1, wread(f, 1))
        free = list(range(2, 30, 3)) + [31, 33]
    else:
        for f in range(7, 16):
            g = 2 * (f - 7)
            G.d(g, wread(f, 0), wread(f, 1))
        free = list(range(1, 22, 2)) + [18, 20, 31]
    if not last:
        G.s(sy, wait_tag([("wq", (j + 1) % 5 if not dyn else ("d", (j + 1) & 7))], lgkm=0), barrier()); G.noslot.add(sy)
        if dyn:
            G.s(sy - 3, salu("s_add_u32", K.sWqWr, K.sWqRd, K.sWqM0), salu("s_add_u32", K.sWqRd, K.sWqRd, U))
            G.s(sy - 1, scmp("s_cmp_ge_u32", K.sWqRd, NU * U), salu("s_cselect_b32", K.sWqRd, 4 * U, K.sWqRd))
            G.v(sy - 1, valu("v_add_u32", K.vW, K.sWqRd, K.vWb))
        else:
            G.v(sy - 1, valu("v_add_u32", K.vW, wq_unit(j + 1), K.vWb))
        g = sy + 1
        for f in range(NPRE(NT)):
            if NT == 3:
                G.d(g, wread(f, 0)); G.d(g + 1, wread(f, 1)); g += 2
            else:
                G.d(g, wread(f, 0), wread(f, 1)); g += 1
    else:
        G.s(sy, wait(lgkm=0), barrier()); G.noslot.add(sy)
    vm = []
    if load_wq:
        G.s(0, salu("s_add_u32", K.sWqOff, K.sWqOff, 32 * 8192))
        if dyn: vm += [([p], d) for p, d in wq_pieces(K.sWqWr, cfg, ("wq", ("d", (j + 4) & 7)))]
        else: vm += [([p], d) for p, d in wq_pieces(wq_unit(j + 4), cfg, ("wq", (j + 4) % 5))]
    if load_x and (j & 1) == 0:
        for qt in range(NT):
            for dj in range(2):
                jj = j + 6 + dj
                vm.append(([], bload(K.xb(jj & 7, qt), K.vX[qt], K.SRD_X, K.sXOff if dyn else 0, jj * 64, cfg["x_flags"])))
    vm += list(extra_vm)
    assert len(vm) <= len(free), (len(vm), len(free))
    free = sorted(free[:len(vm)])
    for (pre, d), g in zip(vm, free):
        if pre:
            if (g - 1) in G.noslot: G.d(g, *pre)
            else: G.s(g - 1, *pre)
        G.d(g, d); G.noslot.add(g)
    if loopend:
        G.s(n - 3, salu("s_add_u32", K.sXOff, K.sXOff, 512), salu("s_add_u32", K.sCnt, K.sCnt, 1))
        G.s(n - 2, scmp("s_cmp_lt_u32", K.sCnt, 3))
        G.v(n - 1, branch("s_cbranch_scc1", loopend))
    return G.build()

def kread(kt, s): return ds_read(K.kf(kt, s), K.vK, kt * 512 + s * 64)
def vread(dt, h):
    d = K.vf(dt)
    return ds_read(d[2 * h:2 * h + 2], K.vV, HU + h * 512 + dt * 32, tr=True)
def exps(par, kt, NT):
    return [valu("v_exp_f32", K.sp(par, qt)[4 * kt + r], K.sp(par, qt)[4 * kt + r]) for qt in range(NT) for r in range(4)]
def cvts(par, NT):
    o = []
    for qt in range(NT):
        s = K.sp(par, qt)
        o += [valu("v_cvt_pk_bf16_f32", s[3], s[2], s[3]), valu("v_cvt_pk_bf16_f32", s[2], s[0], s[1]),
              valu("v_cvt_pk_bf16_f32", s[4], s[4], s[5]), valu("v_cvt_pk_bf16_f32", s[5], s[6], s[7])]
    return o
def pfrag(par, qt): return K.sp(par, qt)[2:6]
def qk_mfmas(par, NT, cinit):
    o = []
    for kt in range(2):
        for s in range(4):
            for qt in range(NT):
                d = K.sp(par, qt)[4 * kt:4 * kt + 4]
                c = d if s else (K.mref(qt) if cinit else 0)
                o.append(mfma(d, K.kf(kt, s), K.q(s, qt, NT), c))
    return o
def pv_mfmas(par, NT, first):
    o = []
    for dt in range(8):
        for qt in range(NT):
            d = K.oacc(dt, qt, NT)
            o.append(mfma(d, K.vf(dt), pfrag(par, qt), 0 if first else d))
    for qt in range(NT):
        o.append(mfma(K.lacc(qt), K.ONES, pfrag(par, qt), 0 if first else K.lacc(qt)))
    return o

def ring_advance_ops(NT):
    if NT == 3: o = [salu("s_add_u32", K.sWr, K.sRd, K.sWvK), salu("s_add_u32", K.sWrV, K.sRd, K.sWvV)]
    else: o = [salu("s_mov_b32", K.sWr, K.sRd)]
    return o + [salu("s_add_u32", K.sRd, K.sRd, U)], [scmp("s_cmp_ge_u32", K.sRd, NU * U), salu("s_cselect_b32", K.sRd, 0, K.sRd)]
def ring_advance(G, g, NT):
    a_, b_ = ring_advance_ops(NT)
    G.s(g - 1, *a_[:-1]); G.s(g, a_[-1]); G.s(g + 1, *b_)

def tile_ops(cfg, NT):
    f = cfg["kv_flags"]
    if NT == 3:
        return [([salu("s_mov_b32", "m0", K.sWr)], dma(K.vDK, K.SRD_K, K.sKOff, 0, f)),
                ([salu("s_add_u32", "m0", K.sWr, 800)], dma(K.vDK, K.SRD_K, K.sKOff, 256, f)),
                ([salu("s_mov_b32", "m0", K.sWrV)], dma(K.vDV, K.SRD_V, K.sVOff, 0, f))]
    ops = [([salu("s_add_u32", "m0", K.sWr, n * 800)], dma(K.vDKV, K.SRD_K, K.sKOff, n * 256, f)) for n in (6, 7)]
    ops += [([salu("s_add_u32", "m0", K.sWr, HU + n * 800)], dma(K.vDKV, K.SRD_V, K.sVOff, n * 256, f)) for n in range(3, 8)]
    return ops
def tile_next(): return [salu("s_add_u32", K.sKOff, K.sKOff, 8192), salu("s_add_u32", K.sVOff, K.sVOff, 8192)]
def set_wr(unit, NT):
    if NT == 3: return [salu("s_add_u32", K.sWr, K.sWvK, unit * U), salu("s_add_u32", K.sWrV, K.sWvV, unit * U)]
    return [salu("s_mov_b32", K.sWr, unit * U)]
def KV_WAIT(NT): return 21 if NT == 3 else 49

def attn_iter(i_par, NT, cfg, first=False, loopend=None):
    pn = i_par ^ 1
    G = Gaps(qk_mfmas(pn, NT, True) + pv_mfmas(i_par, NT, first))
    n = len(G); nA = 4 * NT; nC = 8 * NT
    dsA = [kread(1, s) for s in range(4)] + [vread(dt, h) for dt in range(4) for h in range(2)]
    cv = cvts(i_par, NT)
    e0 = exps(pn, 0, NT); e1 = exps(pn, 1, NT)
    dsC = [vread(dt, h) for dt in range(4, 8) for h in range(2)]
    ops = tile_ops(cfg, NT)
    upd = [valu("v_add_u32", K.vK, K.sRd, K.vKb), valu("v_add_u32", K.vV, K.sRd, K.vVb)]
    def put_dma(g, k_):
        pre, d = ops[k_]
        G.s(g - 1, *pre); G.mem[g].insert(0, d); G.noslot.add(g)
    if NT == 3:
        for g in range(12): G.d(g, dsA[g]); G.v(g, cv[g])
        for k_, e in enumerate(e0): G.v(nA + k_, e)
        plan = ["dd", "e", "m", "e", "dd", "e", "m", "e", "dd", "e", "m", "e", "dd", "e", "e", "e", "u", "e", "B", "k", "e", "k", "e", "k", "k", "", ""]
        ei = di = mi = ki = 0
        for k_, p in enumerate(plan):
            g = nC + k_
            if p == "dd": G.d(g, dsC[di], dsC[di + 1]); di += 2; G.noslot.add(g)
            elif p == "e": G.v(g, e1[ei]); ei += 1
            elif p == "m": put_dma(g, mi); mi += 1
            elif p == "u": ring_advance(G, g - 2, NT); G.v(g, *upd)
            elif p == "B": G.s(g, wait(lgkm=0, vm=KV_WAIT(NT)), barrier()); G.noslot.add(g)
            elif p == "k": G.d(g, kread(0, ki)); ki += 1
        assert (ei, di, mi, ki) == (12, 8, 3, 4), (ei, di, mi, ki)
        G.s(nC + 11, *tile_next())
    else:
        for g in range(8): G.d(g, dsA[g]); G.v(g, cv[g])
        for k_, g in enumerate(range(8, 12)): G.d(g, dsA[8 + k_])
        for k_, e in enumerate(e0): G.v(nA + k_, e)
        for k_ in range(7): put_dma(1 + 2 * k_, k_)
        G.s(14, *tile_next())
        plan = ["dd", "e", "dd", "e", "dd", "e", "dd", "e", "e", "u", "e", "B", "k", "k", "ke", "ke", "", ""]
        ei = di = ki = 0
        for k_, p in enumerate(plan):
            g = nC + k_
            if p == "dd": G.d(g, dsC[di], dsC[di + 1]); di += 2
            elif p == "u": ring_advance(G, g - 2, NT); G.v(g, *upd)
            elif p == "B": G.s(g, wait(lgkm=0, vm=KV_WAIT(NT)), barrier()); G.noslot.add(g)
            else:
                if "k" in p: G.d(g, kread(0, ki)); ki += 1
                if "e" in p: G.v(g, e1[ei]); ei += 1
        assert (ei, di, ki) == (8, 8, 4), (ei, di, ki)
    if loopend:
        G.s(n - 3, salu("s_add_u32", K.sCnt, K.sCnt, 1))
        G.s(n - 2, scmp("s_cmp_lt_u32", K.sCnt, 7))
        G.v(n - 1, branch("s_cbranch_scc1", loopend))
    return G.build()

def xlane(op, dst, tmp):
    return [valu("v_mov_b32", tmp, dst), permlane("v_permlane32_swap_b32", tmp, dst), valu(op, dst, tmp, dst),
            valu("v_mov_b32", tmp, dst), permlane("v_permlane16_swap_b32", tmp, dst), valu(op, dst, tmp, dst)]

def interleave(lists):
    out = []
    for i in range(max(len(l) for l in lists)):
        for l in lists:
            if i < len(l): out.append(l[i])
    return out

def attn_pre(NT, cfg):
    o = []
    for kt in range(2):
        for s in range(4): o.append(kread(kt, s))
    G = Gaps(qk_mfmas(0, NT, False))
    o += G.build()
    return o

def attn_max(NT):
    per = []
    for qt in range(NT):
        s = K.sp(0, qt); m = K.TM[qt]; t = K.TM[4 + qt]
        l = [valu("v_max3_f32", m, s[0], s[1], s[2]), valu("v_max3_f32", t, s[3], s[4], s[5]),
             valu("v_max3_f32", m, m, s[6], s[7]), valu("v_max_f32", m, t, m)]
        l += xlane("v_max_f32", m, t)
        l += [valu("v_sub_f32", K.mref(qt)[r], 0, m) for r in range(4)]
        l += [valu("v_sub_f32", s[r], s[r], m) for r in range(8)]
        l += [valu("v_exp_f32", s[r], s[r]) for r in range(8)]
        per.append(l)
    return interleave(per)

def attn_tail(NT, cfg, loader, lbl):
    o = []
    E = o.append
    for dt in range(8):
        for h in range(2): E(vread(dt, h))
    o += cvts(1, NT)
    G = Gaps(pv_mfmas(1, NT, False)[8 * NT:] + pv_mfmas(1, NT, False)[:8 * NT])
    for k_, (pre, d) in enumerate(tile_ops(cfg, NT)):
        g = 1 + 2 * k_
        G.s(g - 1, *pre); G.d(g, d); G.noslot.add(g)
    G.s(16, *tile_next())
    o += G.build()
    E(salu("s_mov_b32", K.sT, f32bits(LMAX)))
    E(valu("v_add_f32", K.t1, K.lacc(0)[0], K.lacc(1)[0]))
    if NT == 3: E(valu("v_add_f32", K.t1, K.lacc(2)[0], K.t1))
    E(vcmp("v_cmp_nge_f32", "vcc", K.sT, K.t1))
    E(nop(4))
    E(branch("s_cbranch_vccnz", f"{lbl}_slow"))
    E(label(f"{lbl}_norm"))
    for qt in range(NT): E(valu("v_rcp_f32", K.RINV[qt], K.lacc(qt)[0]))
    for qt in range(NT):
        E(salu("s_add_u32", K.sT, K.sOOff, qt * 131072))
        for s in range(4):
            a = V(K.OACC + 8 * (s * NT + qt), 8)
            for r in range(8): E(valu("v_mul_f32", a[r], K.RINV[qt], a[r]))
            for r in range(4): E(valu("v_cvt_pk_bf16_f32", a[r], a[2 * r], a[2 * r + 1]))
            E(bstore(a[0:4], K.vO, K.SRD_O, K.sT, s * 1024, cfg["o_st_flags"]))
    return o

def slow_path(NT, cfg, lbl):
    o = [label(f"{lbl}_slow")]
    E = o.append
    sH = S(48); sC = S(49); sO = S(50)
    vKo = V(21); vVo = V(22);
    E(wait(vm=0, lgkm=0))
    E(salu("s_lshl_b32", sH, K.sHead, 17))
    E(valu("v_and_b32", K.t0, 15, K.vLane)); E(valu("v_lshrrev_b32", K.t1, 4, K.vLane))
    E(valu("v_lshlrev_b32", vKo, 8, K.t0)); E(valu("v_lshl_add_u32", vKo, K.t1, 4, vKo))
    E(valu("v_lshlrev_b32", vVo, 10, K.t1)); E(valu("v_lshl_add_u32", vVo, K.t0, 1, vVo))
    for qt in range(NT): E(valu("v_mov_b32", K.TM[qt], 0xff800000))
    def kload():
        l = []
        for kt in range(2):
            l.append(salu("s_add_u32", sO, sC, kt * 4096))
            for s in range(4): l.append(bload(K.kf(kt, s), vKo, K.SRD_K, sO, s * 64))
        l.append(wait(vm=0))
        return l
    E(salu("s_mov_b32", sC, sH))
    b = [label(f"{lbl}_s1")] + kload() + qk_mfmas(0, NT, False) + [nop(7)]
    for qt in range(NT):
        s = K.sp(0, qt); m = K.TM[qt]
        for r in range(0, 8, 2): b.append(valu("v_max3_f32", m, m, s[r], s[r + 1]))
    b += [salu("s_add_u32", sC, sC, 8192), salu("s_and_b32", sO, sC, 0x1ffff), scmp("s_cmp_lg_u32", sO, 0), branch("s_cbranch_scc1", f"{lbl}_s1")]
    o.append(Loop(b, reps=2))
    for qt in range(NT):
        o += xlane("v_max_f32", K.TM[qt], K.TM[4 + qt])
        for r in range(4): E(valu("v_sub_f32", K.mref(qt)[r], 0, K.TM[qt]))
        for r in range(4): E(valu("v_mov_b32", K.lacc(qt)[r], 0))
    for r in range(32 * NT): E(valu("v_mov_b32", V(K.OACC + r), 0))
    E(salu("s_mov_b32", sC, sH))
    b = [label(f"{lbl}_s2")] + kload()
    vt = K.sp(1, 0); fr = K.sp(1, 1)[0:4]
    b += qk_mfmas(0, NT, True) + [nop(7)] + exps(0, 0, NT) + exps(0, 1, NT) + cvts(0, NT)
    for dt in range(8):
        for h in range(2):
            b.append(salu("s_add_u32", sO, sC, h * 4096))
            for r in range(4):
                d = vt[4 * h + r]
                b.append(raw(f"buffer_load_ushort {d}, {vVo}, {K.SRD_V}, {sO} offen offset:{r * 256 + dt * 32}", "vload", d.regs(), vVo.regs() + K.SRD_V.regs() + sO.regs()))
        b.append(wait(vm=0))
        for r in range(4): b.append(valu("v_lshl_or_b32", fr[r], vt[2 * r + 1], 16, vt[2 * r]))
        for qt in range(NT): b.append(mfma(K.oacc(dt, qt, NT), fr, pfrag(0, qt), K.oacc(dt, qt, NT)))
        b.append(nop(7))
    for qt in range(NT): b.append(mfma(K.lacc(qt), K.ONES, pfrag(0, qt), K.lacc(qt)))
    b += [nop(7), salu("s_add_u32", sC, sC, 8192), salu("s_and_b32", sO, sC, 0x1ffff), scmp("s_cmp_lg_u32", sO, 0), branch("s_cbranch_scc1", f"{lbl}_s2")]
    o.append(Loop(b, reps=2))
    E(nop(7))
    E(branch("s_branch", f"{lbl}_norm"))
    return o

def wave_main(NT, cfg, lbl):
    loader = NT == 2
    prog = []
    E = prog.append
    E(salu("s_mov_b32", K.sWqOff, 0))
    for j in range(4):
        if j: E(salu("s_add_u32", K.sWqOff, K.sWqOff, 32 * 8192))
        for p, d in wq_pieces(wq_unit(j), cfg, ("wq", j % 5) if loader else ("wq", ("d", j & 7))):
            E(p); E(d)
        if j < 3:
            for qt in range(NT):
                for dj in range(2):
                    jj = 2 * j + dj
                    E(bload(K.xb(jj, qt), K.vX[qt], K.SRD_X, 0, jj * 64, cfg["x_flags"]))
    for i in range(64 * NT): E(valu("v_mov_b32", V(K.ACC + i), 0))
    for r in range(4): E(valu("v_mov_b32", K.ONES[r], 0x3f803f80))
    E(valu("v_add_u32", K.vW, wq_unit(0), K.vWb))
    prog += stamp(cfg, 1)
    E(wait_tag([("wq", 0) if loader else ("wq", ("d", 0))]))
    E(barrier())
    prog += stamp(cfg, 2)
    for f in range(NPRE(NT)):
        for h in range(2): E(wread(f, h))
    def late_tile(t):
        ops = tile_ops(cfg, NT)
        pre0 = set_wr(t, NT) + [salu("s_mov_b32", K.sKOff, (t + 1) * 8192), salu("s_mov_b32", K.sVOff, t * 8192)]
        return [(pre0 + ops[0][0], ops[0][1])] + ops[1:]
    if loader:
        early = kv_pieces(False, K0_OFF, 0, list(range(8)), cfg, "kv0")
        for t in range(4):
            early += kv_pieces(False, t * U, t + 1, list(range(8)), cfg, "kv0")
            early += kv_pieces(True, t * U + HU, t, list(range(8)), cfg, "kv0")
        for j in range(32):
            ex = []
            if 2 <= j < 26: ex = early[3 * (j - 2):3 * (j - 1)]
            if j >= 28: ex = late_tile(j - 24)
            prog += qproj_step(j, NT, cfg, False, extra_vm=ex, load_wq=j + 4 < 32, load_x=j + 6 < 32, last=j == 31)
    else:
        E(salu("s_mov_b32", K.sCnt, 0)); E(salu("s_mov_b32", K.sXOff, 0))
        E(salu("s_mov_b32", K.sWqRd, wq_unit(0)))
        E(salu("s_add_u32", K.sWqWr, K.sWqM0, wq_unit(4)))
        body = [label(f"{lbl}_qloop")]
        for j in range(8): body += qproj_step(j, NT, cfg, True, loopend=f"{lbl}_qloop" if j == 7 else None)
        prog.append(Loop(body, reps=3))
        for j in range(8):
            prog += qproj_step(j, NT, cfg, True, extra_vm=late_tile(j) if j >= 4 else [], load_wq=j + 28 < 32, load_x=j + 30 < 32, last=j == 7)
    prog += stamp(cfg, 3)
    E(salu("s_mov_b32", K.sScale[0], f32bits(QSCALE))); E(salu("s_mov_b32", K.sScale[1], f32bits(QSCALE)))
    for p in range(8 * NT):
        a = V(K.ACC + 8 * p, 8)
        for r in range(0, 8, 2): E(valu("v_pk_mul_f32", a[r:r + 2], a[r:r + 2], K.sScale))
        if p < 4 * NT:
            d = V(K.Q + 4 * p, 4)
            for r in range(4): E(valu("v_cvt_pk_bf16_f32", d[r], a[2 * r], a[2 * r + 1]))
        else:
            for r in range(4): E(valu("v_cvt_pk_bf16_f32", a[r], a[2 * r], a[2 * r + 1]))
            for r in range(4): E(accwr(A(K.Q1 + 4 * (p - 4 * NT) + r), a[r]))
    E(salu("s_mov_b32", K.sHead, 0))
    E(salu("s_mov_b32", K.sRd, 0))
    prog += set_wr(8, NT)
    E(salu("s_mov_b32", K.sKOff, 9 * 8192)); E(salu("s_mov_b32", K.sVOff, 8 * 8192))
    E(valu("v_add_u32", K.vK, K0_OFF, K.vKb))
    prog += stamp(cfg, 4)
    hb = [label(f"{lbl}_head")]
    hb += attn_pre(NT, cfg)
    hb += [wait(lgkm=0, vm=KV_WAIT(NT)), barrier()]
    hb += [valu("v_add_u32", K.vK, K.sRd, K.vKb), valu("v_add_u32", K.vV, K.sRd, K.vVb)]
    hb += [kread(0, s) for s in range(4)]
    hb += attn_max(NT)
    hb += attn_iter(0, NT, cfg, first=True)
    hb += [salu("s_mov_b32", K.sCnt, 0)]
    body = [label(f"{lbl}_aloop")] + attn_iter(1, NT, cfg) + attn_iter(0, NT, cfg, loopend=f"{lbl}_aloop")
    hb.append(Loop(body, reps=2))
    hb += attn_tail(NT, cfg, loader, lbl)
    hb += [scmp("s_cmp_eq_u32", K.sHead, 1), branch("s_cbranch_scc1", f"{lbl}_done")]
    hb += stamp(cfg, 5)
    hb += [salu("s_mov_b32", K.sHead, 1), salu("s_add_u32", K.sOOff, K.sOOff, 4096)]
    ra, rb = ring_advance_ops(NT)
    hb += ra + rb
    hb += [accrd(V(K.Q + i), A(K.Q1 + i)) for i in range(16 * NT)]
    hb += [branch("s_branch", f"{lbl}_head")]
    prog.append(Loop(hb, reps=2))
    E(label(f"{lbl}_done"))
    prog += stamp(cfg, 6)
    if cfg.get("stamps"):
        E(wait(vm=0)); prog += stamp(cfg, 7); prog += stamp_dump(cfg, 8, K.sWave, 0)
    E(raw("s_endpgm", "branch"))
    slow = slow_path(NT, cfg, lbl)
    return prog, slow

def gen_k1(cfg, warn=None):
    pro = []
    E = pro.append
    E(scmp("s_cmp_ge_u32", S(2), 256))
    E(branch("s_cbranch_scc1", "k1_exit"))
    pro += stamp(cfg, 0)
    E(sload(S(44, 8), S(0, 2), 0))
    E(sload(S(52, 8), S(0, 2), 40))
    E(sload(S(60, 2), S(0, 2), 96))
    if cfg.get("warm_code"):
        E(raw("s_getpc_b64 s[62:63]", "salu", ["s62", "s63"]))
        E(raw("k1_pc:", "label"))
        E(valu("v_lshlrev_b32", V(5), 7, V(0)))
        E(valu("v_add_u32", V(6), 0x8000, V(5)))
        E(valu("v_min_u32", V(5), "k1_exit-k1_pc", V(5)))
        E(valu("v_min_u32", V(6), "k1_exit-k1_pc", V(6)))
        E(raw("global_load_dword v21, v5, s[62:63]", "vload", ["v21"], ["v5", "s62", "s63"]))
        E(raw("global_load_dword v22, v6, s[62:63]", "vload", ["v22"], ["v6", "s62", "s63"]))
    E(valu("v_and_b32", K.vLane, 63, V(0)))
    E(valu("v_lshrrev_b32", K.t0, 6, V(0)))
    E(readfirstlane(K.sWave, K.t0))
    sBlk, sB, sHp = S(27), S(28), S(29)
    E(salu("s_bfe_u32", sBlk, S(2), (1 << 16) | 2))
    E(salu("s_lshr_b32", sB, S(2), 5))
    E(salu("s_and_b32", sHp, S(2), 3)); E(salu("s_lshl_b32", sHp, sHp, 2))
    E(salu("s_bfe_u32", K.sT, S(2), (2 << 16) | 3)); E(salu("s_add_u32", sHp, sHp, K.sT))
    l, t0, t1, t2, t3 = K.vLane, K.t0, K.t1, K.t2, K.t3
    E(valu("v_and_b32", t0, 15, l))
    E(valu("v_lshrrev_b32", t1, 4, l))
    E(salu("s_and_b32", K.sT, K.sWave, 1)); E(salu("s_lshl_b32", K.sT, K.sT, 1))
    E(salu("s_lshr_b32", K.sT2, K.sWave, 1)); E(salu("s_lshl_b32", K.sT2, K.sT2, 3))
    E(salu("s_add_u32", K.sT, K.sT, K.sT2)); E(salu("s_lshl_b32", K.sT, K.sT, 13))
    E(valu("v_lshrrev_b32", t2, 5, l)); E(valu("v_lshlrev_b32", t2, 15, t2))
    E(valu("v_and_b32", t3, 31, l)); E(valu("v_lshl_add_u32", t2, t3, 4, t2))
    E(valu("v_add_u32", K.vDWQ[0], K.sT, t2))
    E(valu("v_add_u32", K.vDWQ[1], 16 * 8192, K.vDWQ[0]))
    E(valu("v_add_u32", K.vDWQ[2], 8192, K.vDWQ[0]))
    E(valu("v_add_u32", K.vDWQ[3], 17 * 8192, K.vDWQ[0]))
    E(salu("s_mul_i32", K.sWqM0, K.sWave, 4096 + 64))
    E(salu("s_mul_i32", K.sT, K.sWave, 48 * 2048))
    E(valu("v_lshlrev_b32", t2, 11, t0)); E(valu("v_lshl_add_u32", t2, t1, 4, t2))
    E(valu("v_add_u32", K.vX[0], K.sT, t2))
    E(valu("v_add_u32", K.vX[1], 32768, K.vX[0])); E(valu("v_add_u32", K.vX[2], 65536, K.vX[0]))
    E(valu("v_lshrrev_b32", t2, 2, l)); E(valu("v_and_b32", t2, 7, t2))
    E(valu("v_lshlrev_b32", K.vWb, 11, t2))
    E(valu("v_lshrrev_b32", t3, 1, t2)); E(valu("v_lshl_add_u32", K.vWb, t3, 6, K.vWb))
    E(valu("v_and_b32", t3, 1, t2)); E(valu("v_lshl_add_u32", K.vWb, t3, 3, K.vWb))
    E(valu("v_lshrrev_b32", t3, 5, l)); E(valu("v_lshl_add_u32", K.vWb, t3, 10, K.vWb))
    E(valu("v_mul_u32_u24", K.vVb, 1056, t2)); E(valu("v_lshl_add_u32", K.vVb, t3, 8, K.vVb))
    E(valu("v_and_b32", t3, 3, l))
    E(valu("v_lshl_add_u32", K.vWb, t3, 4, K.vWb)); E(valu("v_lshl_add_u32", K.vVb, t3, 3, K.vVb))
    E(valu("v_and_b32", t2, 7, l)); E(valu("v_mul_u32_u24", K.vKb, 1056, t2))
    E(valu("v_lshrrev_b32", t2, 3, t0)); E(valu("v_lshl_add_u32", K.vKb, t2, 8, K.vKb))
    E(valu("v_lshl_add_u32", K.vKb, t1, 4, K.vKb))
    E(valu("v_lshlrev_b32", K.vDKV, 11, t1)); E(valu("v_lshl_add_u32", K.vDKV, t0, 4, K.vDKV))
    E(valu("v_lshlrev_b32", K.vO, 4, l))
    E(salu("s_lshl_b32", K.sT, K.sWave, 9)); E(valu("v_add_u32", K.vDK, K.sT, K.vDKV))
    E(salu("s_lshl_b32", K.sT, K.sWave, 8)); E(valu("v_add_u32", K.vDV, K.sT, K.vDKV))
    E(salu("s_mul_i32", K.sWvK, K.sWave, 2112))
    E(salu("s_mul_i32", K.sWvV, K.sWave, 1056)); E(salu("s_add_u32", K.sWvV, K.sWvV, HU))
    E(salu("s_mul_i32", K.sOOff, K.sWave, 3 * 131072)); E(salu("s_lshl_b32", K.sT, sHp, 13)); E(salu("s_add_u32", K.sOOff, K.sOOff, K.sT))
    E(wait(lgkm=0))
    E(scmp("s_cmp_eq_u32", sBlk, 0))
    E(salu("s_cselect_b64", S(4, 2), S(44, 2), S(52, 2)))
    E(salu("s_cselect_b64", S(12, 2), S(46, 2), S(54, 2)))
    E(salu("s_cselect_b64", S(16, 2), S(48, 2), S(56, 2)))
    E(salu("s_cselect_b64", S(8, 2), S(50, 2), S(58, 2)))
    E(salu("s_lshl_b32", K.sT, sHp, 9))
    E(salu("s_add_u32", S(8), S(8), K.sT)); E(salu("s_addc_u32", S(9), S(9), 0))
    E(salu("s_sub_u32", S(10), 1024 * 8192, K.sT)); E(salu("s_mov_b32", S(11), 0x00020000))
    E(salu("s_mul_i32", K.sT, sB, 360448))
    E(salu("s_add_u32", S(4), S(4), K.sT)); E(salu("s_addc_u32", S(5), S(5), 0))
    E(salu("s_mov_b32", S(6), 360448)); E(salu("s_mov_b32", S(7), 0x00020000))
    E(salu("s_lshl_b32", K.sT, sB, 4)); E(salu("s_add_u32", K.sT, K.sT, sHp)); E(salu("s_lshl_b32", K.sT, K.sT, 18))
    E(salu("s_add_u32", S(12), S(12), K.sT)); E(salu("s_addc_u32", S(13), S(13), 0))
    E(salu("s_mov_b32", S(14), 262144)); E(salu("s_mov_b32", S(15), 0x00020000))
    E(salu("s_add_u32", S(16), S(16), K.sT)); E(salu("s_addc_u32", S(17), S(17), 0))
    E(salu("s_mov_b32", S(18), 262144)); E(salu("s_mov_b32", S(19), 0x00020000))
    E(salu("s_mul_i32", K.sT, sBlk, 88)); E(salu("s_mul_i32", K.sT2, sB, 11)); E(salu("s_add_u32", K.sT, K.sT, K.sT2)); E(salu("s_lshl_b32", K.sT, K.sT, 17))
    E(salu("s_add_u32", S(20), S(60), K.sT)); E(salu("s_addc_u32", S(21), S(61), 0))
    E(salu("s_mov_b32", S(22), 11 * 131072)); E(salu("s_mov_b32", S(23), 0x00020000))
    E(scmp("s_cmp_eq_u32", K.sWave, 3))
    E(branch("s_cbranch_scc1", "k1_w3"))
    a, sa = wave_main(3, cfg, "k1a")
    b, sb = wave_main(2, cfg, "k1b")
    b = [label("k1_w3")] + b
    for _ in range(2):
        for p in (pro + a, pro + b, sa, sb):
            tr = flatten_trace(p); insert_waits(tr); check_hazards(tr, warn=warn)
    L = emit(flatten_static(pro + a)) + emit(flatten_static(b)) + ["k1_exit:", "    s_endpgm"] + emit(flatten_static(sa)) + emit(flatten_static(sb))
    return L
```

```python
from asmlib import *

HU = 8448
KNAME2 = "oproj_kernel"

def srd(dst, base_lo, base_hi, nrec):
    o = []
    if str(base_lo) != str(dst[0]): o.append(salu("s_mov_b32", dst[0], base_lo))
    if str(base_hi) != str(dst[1]): o.append(salu("s_mov_b32", dst[1], base_hi))
    o.append(salu("s_mov_b32", dst[2], nrec))
    o.append(salu("s_mov_b32", dst[3], 0x00020000))
    return o

class P4:
    SRD_WO = S(4, 4); SRD_O = S(8, 4); SRD_OUT = S(12, 4)
    sWave = S(16); sLds = S(21); sCurW = S(22); sCurO = S(23); sNxtW = S(24); sNxtO = S(25); sGi = S(26); sT = S(27); sT2 = S(28); sW32 = S(29); sWoff = S(30)
    vDW = V(8, 8); vOO = V(16, 6); vW = V(22); vXW = V(23, 3); vXR = V(26); vOut = V(27)
    ACC = 64
    @staticmethod
    def acc(j, r, NT): return V(P4.ACC + 4 * (j * NT + r), 4)
    @staticmethod
    def ob(buf, r): return A(24 * buf + 4 * r, 4)
    @staticmethod
    def wf(f): return A(96 + 4 * (f & 3), 4)

def p4_wread(f, slot, h):
    d = P4.wf(f)
    return ds_read(d[2 * h:2 * h + 2], P4.vW, slot * HU + h * 512 + f * 32, tr=True)

def p4_loads(NT, buf, soffW, soffO, offO, cfg):
    ops = []
    for n in range(8):
        ops.append((salu("s_add_u32", "m0", P4.sLds, buf * HU + n * 1056),
                    dma(P4.vDW[n], P4.SRD_WO, soffW, 0, cfg["wo_flags"], tag=("w", buf))))
    for r in range(NT):
        ops.append((None, bload(P4.ob(buf, r), P4.vOO[r], P4.SRD_O, soffO, offO, cfg["o_ld_flags"], tag=("o", buf))))
    return ops

def p4_group_base(gi_reg, dstW, dstO):
    o = []
    o.append(salu("s_and_b32", P4.sT, gi_reg, 3))
    o.append(salu("s_lshl_b32", P4.sT, P4.sT, 3))
    o.append(salu("s_and_b32", P4.sT2, gi_reg, 4))
    o.append(salu("s_add_u32", P4.sT, P4.sT, P4.sT2))
    o.append(salu("s_add_u32", P4.sT, P4.sT, P4.sW32))
    o.append(salu("s_lshl_b32", dstO, P4.sT, 10))
    o.append(salu("s_lshl_b32", dstW, P4.sT, 16))
    o.append(scmp("s_cmp_ge_u32", gi_reg, 8))
    o.append(salu("s_cselect_b32", dstO, 0x7f000000, dstO))
    o.append(salu("s_cselect_b32", dstW, 0x7f000000, dstW))
    return o

def p4_main(NT, cfg, lbl):
    prog = []
    E = prog.append
    E(salu("s_mov_b32", P4.sGi, 0))
    prog += p4_group_base(P4.sGi, P4.sCurW, P4.sCurO)
    for t in range(3):
        E(salu("s_add_u32", P4.sWoff, P4.sCurW, t * 65536))
        for pre, vm in p4_loads(NT, t, P4.sWoff, P4.sCurO, t * 1024, cfg):
            if pre: E(pre)
            E(vm)
    for i in range(8 * NT * 4):
        E(valu("v_mov_b32", V(P4.ACC + i), 0))
    prog += stamp(cfg, 1)
    E(wait_tag([("w", 0), ("o", 0)]))
    prog += stamp(cfg, 2)
    for f in range(3):
        for h in range(2): E(p4_wread(f, 0, h))
    body = [label(f"{lbl}_loop")]
    for s in range(4):
        G = Gaps([mfma(P4.acc(j, r, NT), P4.wf(j), P4.ob(s, r), P4.acc(j, r, NT)) for j in range(8) for r in range(NT)])
        n = len(G)
        nb = (s + 3) & 3
        if s == 0:
            G.s(0, salu("s_add_u32", P4.sWoff, P4.sCurW, 3 * 65536))
            lds_ = p4_loads(NT, nb, P4.sWoff, P4.sCurO, 3 * 1024, cfg)
            gb = [salu("s_add_u32", P4.sGi, P4.sGi, 1)] + p4_group_base(P4.sGi, P4.sNxtW, P4.sNxtO)
            g0 = 28 if NT == 6 else 26
            for i, x in enumerate(gb): G.s(g0 + i // 2 + (0), x)
        else:
            G.s(0, salu("s_add_u32", P4.sWoff, P4.sNxtW, (s - 1) * 65536))
            lds_ = p4_loads(NT, nb, P4.sWoff, P4.sNxtO, (s - 1) * 1024, cfg)
        for i, (pre, vm) in enumerate(lds_):
            if pre: G.s(2 * i, pre)
            G.d(2 * i + 1, vm); G.noslot.add(2 * i + 1)
        for f in range(3, 8):
            g = 0 if f == 3 else (f - 3) * NT
            g += g & 1
            G.d(g, p4_wread(f, s, 0)); G.d(g + 2, p4_wread(f, s, 1))
        sy = 6 * NT - 1
        G.s(sy, wait_tag([("w", (s + 1) & 3), ("o", (s + 1) & 3)], lgkm=0))
        ns = (s + 1) & 3
        G.d(sy + 1, p4_wread(0, ns, 0)); G.d(sy + 2, p4_wread(0, ns, 1))
        G.d(sy + 3, p4_wread(1, ns, 0)); G.d(sy + 4, p4_wread(1, ns, 1))
        G.d(7 * NT, p4_wread(2, ns, 0)); G.d(7 * NT + 1, p4_wread(2, ns, 1))
        if s == 3:
            G.s(n - 3, salu("s_mov_b32", P4.sCurW, P4.sNxtW), salu("s_mov_b32", P4.sCurO, P4.sNxtO))
            G.s(n - 2, scmp("s_cmp_lt_u32", P4.sGi, 8))
            G.s(n - 1, branch("s_cbranch_scc1", f"{lbl}_loop"))
        body += G.build()
    prog.append(Loop(body, reps=3))
    E(wait(vm=0, lgkm=0))
    prog += stamp(cfg, 3)
    E(barrier())
    prog += stamp(cfg, 4)
    for jp in range(1, 4):
        for jj in range(2):
            for r in range(NT):
                E(ds_write(P4.vXW[jp - 1], P4.acc(2 * jp + jj, r, NT), (jj * NT + r) * 1024))
    E(wait(lgkm=0))
    E(barrier())
    for jp in range(1, 4):
        for jj in range(2):
            for r in range(NT):
                E(ds_read(P4.acc(2 * jp + jj, r, NT), P4.vXR, ((jp - 1) * 12 + jj * NT + r) * 1024))
    for jp in range(1, 4):
        for jj in range(2):
            for r in range(NT):
                for k in range(4):
                    E(valu("v_add_f32", P4.acc(jj, r, NT)[k], P4.acc(2 * jp + jj, r, NT)[k], P4.acc(jj, r, NT)[k]))
    for r in range(NT):
        t0, t1 = P4.acc(0, r, NT), P4.acc(1, r, NT)
        o = V(32 + 4 * r, 4)
        E(valu("v_cvt_pk_bf16_f32", o[0], t0[0], t0[1]))
        E(valu("v_cvt_pk_bf16_f32", o[1], t0[2], t0[3]))
        E(valu("v_cvt_pk_bf16_f32", o[2], t1[0], t1[1]))
        E(valu("v_cvt_pk_bf16_f32", o[3], t1[2], t1[3]))
    for r in range(NT):
        o = V(32 + 4 * r, 4)
        E(permlane("v_permlane32_swap_b32", o[0], o[2]))
        E(permlane("v_permlane32_swap_b32", o[1], o[3]))
    for r in range(NT):
        o = V(32 + 4 * r, 4)
        E(permlane("v_permlane16_swap_b32", o[0], o[2]))
        E(permlane("v_permlane16_swap_b32", o[1], o[3]))
    for r in range(NT):
        o = V(32 + 4 * r, 4)
        E(salu("s_mov_b32", P4.sT, r * 65536))
        E(bstore(o, P4.vOut, P4.SRD_OUT, P4.sT, 0, cfg["out_flags"]))
    prog += stamp(cfg, 5)
    if cfg.get("stamps"):
        E(wait(vm=0))
        prog += stamp(cfg, 6)
        prog += stamp_dump(cfg, 7, P4.sWave, 1)
    E(raw("s_endpgm", "branch"))
    return prog

def p4_lane_setup():
    o = []
    E = o.append
    v1 = V(1); t0 = V(2); t1 = V(3); t2 = V(4)
    E(salu("s_mul_i32", P4.sLds, P4.sWave, 4 * HU))
    E(salu("s_lshl_b32", P4.sW32, P4.sWave, 5))
    E(salu("s_lshl_b32", P4.sT, P4.sWave, 6))
    E(valu("v_and_b32", t0, 15, v1))
    E(valu("v_lshrrev_b32", t1, 4, v1))
    E(valu("v_lshlrev_b32", t2, 4, t0))
    E(valu("v_add_u32", t2, P4.sT, t2))
    E(valu("v_and_b32", t2, 255, t2))
    E(valu("v_lshl_add_u32", P4.vDW[0], t1, 14, t2))
    for n in range(1, 8): E(valu("v_add_u32", P4.vDW[n], n * 2048, P4.vDW[0]))
    E(valu("v_lshlrev_b32", P4.vOO[0], 4, v1))
    for r in range(1, 6): E(valu("v_add_u32", P4.vOO[r], r * 131072, P4.vOO[0]))
    E(valu("v_lshlrev_b32", P4.vOut, 12, t0))
    E(valu("v_lshl_add_u32", P4.vOut, t1, 4, P4.vOut))
    E(valu("v_add_u32", P4.vOut, P4.sT, P4.vOut))
    E(valu("v_lshrrev_b32", t2, 2, v1))
    E(valu("v_and_b32", t2, 7, t2))
    E(valu("v_mul_u32_u24", P4.vW, 1056, t2))
    E(valu("v_lshrrev_b32", t2, 5, v1))
    E(valu("v_lshl_add_u32", P4.vW, t2, 8, P4.vW))
    E(valu("v_and_b32", t2, 3, v1))
    E(valu("v_lshl_add_u32", P4.vW, t2, 3, P4.vW))
    E(valu("v_add_u32", P4.vW, P4.sLds, P4.vW))
    for jp in range(1, 4):
        E(salu("s_add_u32", P4.sT, P4.sWave, jp))
        E(salu("s_and_b32", P4.sT, P4.sT, 3))
        E(salu("s_mul_i32", P4.sT, P4.sT, 36 * 1024))
        E(salu("s_add_u32", P4.sT, P4.sT, (jp - 1) * 12 * 1024))
        E(valu("v_add_u32", P4.vXW[jp - 1], P4.sT, P4.vOO[0]))
    E(salu("s_mul_i32", P4.sT, P4.sWave, 36 * 1024))
    E(valu("v_add_u32", P4.vXR, P4.sT, P4.vOO[0]))
    return o

def gen_k2(cfg, warn=None):
    L = []
    pro = []
    E = pro.append
    E(scmp("s_cmp_ge_u32", S(2), 256))
    E(branch("s_cbranch_scc1", "k2_exit"))
    pro += stamp(cfg, 0)
    E(sload(S(32, 2), S(0, 2), 32))
    E(sload(S(34, 2), S(0, 2), 72))
    E(sload(S(36, 2), S(0, 2), 80))
    E(sload(S(38, 2), S(0, 2), 96))
    if cfg.get("warm_code"):
        E(raw("s_getpc_b64 s[40:41]", "salu", ["s40", "s41"]))
        E(raw("k2_pc:", "label"))
        E(valu("v_lshlrev_b32", V(5), 7, V(0)))
        E(valu("v_min_u32", V(5), "k2_exit-k2_pc", V(5)))
        E(raw("global_load_dword v6, v5, s[40:41]", "vload", ["v6"], ["v5", "s40", "s41"]))
    E(valu("v_and_b32", V(1), 63, V(0)))
    E(valu("v_lshrrev_b32", V(2), 6, V(0)))
    E(readfirstlane(P4.sWave, V(2)))
    sBlk, sB, sHalf, sNt = S(17), S(18), S(19), S(20)
    E(salu("s_bfe_u32", sBlk, S(2), (1 << 16) | 2))
    E(salu("s_lshr_b32", sB, S(2), 5))
    E(salu("s_xor_b32", sHalf, S(2), sB))
    E(salu("s_and_b32", sHalf, sHalf, 1))
    E(salu("s_bfe_u32", sNt, S(2), (2 << 16) | 3))
    E(salu("s_and_b32", P4.sT, S(2), 2))
    E(salu("s_lshl_b32", P4.sT, P4.sT, 1))
    E(salu("s_add_u32", sNt, sNt, P4.sT))
    pro += p4_lane_setup()
    E(wait(lgkm=0))
    E(scmp("s_cmp_eq_u32", sBlk, 0))
    E(salu("s_cselect_b64", S(4, 2), S(32, 2), S(34, 2)))
    E(salu("s_lshl_b32", P4.sT, sNt, 8))
    E(salu("s_add_u32", S(4), S(4), P4.sT))
    E(salu("s_addc_u32", S(5), S(5), 0))
    E(salu("s_sub_u32", S(6), 4096 * 2048, P4.sT))
    E(salu("s_mov_b32", S(7), 0x00020000))
    E(salu("s_mul_i32", P4.sT, sBlk, 88))
    E(salu("s_mul_i32", P4.sT2, sB, 11))
    E(salu("s_add_u32", P4.sT, P4.sT, P4.sT2))
    E(salu("s_mul_i32", P4.sT2, sHalf, 6))
    E(salu("s_add_u32", P4.sT, P4.sT, P4.sT2))
    E(salu("s_lshl_b32", P4.sT, P4.sT, 17))
    E(salu("s_add_u32", S(8), S(38), P4.sT))
    E(salu("s_addc_u32", S(9), S(39), 0))
    E(salu("s_sub_u32", P4.sT2, 6, sHalf))
    E(salu("s_lshl_b32", S(10), P4.sT2, 17))
    E(salu("s_mov_b32", S(11), 0x00020000))
    E(salu("s_mul_i32", P4.sT, sB, 176))
    E(salu("s_mul_i32", S(31), sHalf, 96))
    E(salu("s_add_u32", P4.sT, P4.sT, S(31)))
    E(salu("s_lshl_b32", P4.sT, P4.sT, 12))
    E(salu("s_lshl_b32", S(31), sBlk, 11))
    E(salu("s_add_u32", P4.sT, P4.sT, S(31)))
    E(salu("s_lshl_b32", S(31), sNt, 8))
    E(salu("s_add_u32", P4.sT, P4.sT, S(31)))
    E(salu("s_add_u32", S(12), S(36), P4.sT))
    E(salu("s_addc_u32", S(13), S(37), 0))
    E(salu("s_lshl_b32", S(14), P4.sT2, 16))
    E(salu("s_sub_u32", S(14), S(14), 4096 - 256))
    E(salu("s_mov_b32", S(15), 0x00020000))
    E(scmp("s_cmp_eq_u32", sHalf, 1))
    E(branch("s_cbranch_scc1", "k2_nt5"))
    a = p4_main(6, cfg, "k2a")
    b = [label("k2_nt5")] + p4_main(5, cfg, "k2b")
    insert_waits(flatten_trace(pro + b)); check_hazards(flatten_trace(pro + b), warn=warn)
    L += finalize(pro + a, warn=warn)
    insert_waits(flatten_trace(pro + b)); check_hazards(flatten_trace(pro + b), warn=warn)
    L = emit(flatten_static(pro + a)) + emit(flatten_static(b))
    L += ["k2_exit:", "    s_endpgm"]
    return L
```

```python
import sys, json
sys.path.insert(0, "gen")
from asmlib import *
import k2
NAME = "concat_heads__mha_block_cached__gqa_block_cached__near_ridge"
HEADER = open(f"cdna_kernels/{NAME}.s.ref").read().split("; Override launch")[0]

def kd(name, vg=512, acc=256, sg=102):
    return [".p2align 6", f".amdhsa_kernel {name}", f"  .amdhsa_next_free_vgpr {vg}", f"  .amdhsa_next_free_sgpr {sg}", f"  .amdhsa_accum_offset {acc}",
            "  .amdhsa_group_segment_fixed_size 0", "  .amdhsa_kernarg_size 104", "  .amdhsa_user_sgpr_count 2",
            "  .amdhsa_user_sgpr_kernarg_segment_ptr 1", "  .amdhsa_system_sgpr_workgroup_id_x 1", ".end_amdhsa_kernel"]

def assemble(kernels):
    out = [HEADER.rstrip()]
    for n, _, lds in kernels:
        out.append(f"; @launch kernel={n} grid=(256,1,1) block=(256,1,1) lds={lds}")
    out += ['.amdgcn_target "amdgcn-amd-amdhsa--gfx950"', ".text"]
    for n, lines, _ in kernels:
        out += [f".globl {n}", ".p2align 8", f".type {n},@function", f"{n}:"] + lines
    out += ['.section .rodata,"a"']
    for n, _, _ in kernels: out += kd(n)
    return "\n".join(out) + "\n"

DEF = dict(wo_flags="", o_ld_flags="", out_flags="", warm_code=True, kv_flags="nt", wq_flags="", x_flags="", o_st_flags="")
if __name__ == "__main__":
    cfg = dict(DEF)
    which = sys.argv[1]; outp = sys.argv[2]
    for kv in sys.argv[3:]:
        k, v = kv.split("=", 1)
        cfg[k] = json.loads(v) if v and v[0] in "0123456789tf[" else v
    ks = []
    if "1" in which:
        import k1
        ks.append((k1.KNAME1, k1.gen_k1(cfg, warn=lambda s: print("k1:", s)), 163840))
    if "2" in which:
        ks.append((k2.KNAME2, k2.gen_k2(cfg, warn=lambda s: print("k2:", s)), 163840))
    open(outp, "w").write(assemble(ks))
```

```python
import re

class R:
    __slots__ = ("k", "i", "n")
    def __init__(self, k, i, n=1):
        self.k, self.i, self.n = k, i, n
    def __str__(self):
        return f"{self.k}{self.i}" if self.n == 1 else f"{self.k}[{self.i}:{self.i+self.n-1}]"
    def regs(self):
        return [f"{self.k}{self.i+j}" for j in range(self.n)]
    def __getitem__(self, j):
        if isinstance(j, slice):
            st = j.start or 0
            return R(self.k, self.i + st, j.stop - st)
        assert 0 <= j < self.n
        return R(self.k, self.i + j, 1)
def V(i, n=1): return R("v", i, n)
def A(i, n=1): return R("a", i, n)
def S(i, n=1): return R("s", i, n)

def _regs(x):
    if isinstance(x, R): return x.regs()
    if isinstance(x, str) and x in ("vcc", "m0", "exec", "scc"): return [x]
    return []

class Ins:
    __slots__ = ("text", "kind", "defs", "uses", "tag", "extra", "req_l", "req_v", "pre_nop")
    def __init__(self, text, kind, defs=(), uses=(), tag=None, extra=None):
        self.text, self.kind, self.defs, self.uses, self.tag, self.extra = text, kind, list(defs), list(uses), tag, extra
        self.req_l = None; self.req_v = None; self.pre_nop = 0

TRANS = ("v_exp_f32", "v_rcp_f32", "v_log_f32", "v_rsq_f32", "v_sqrt_f32")

def fmt(x):
    if isinstance(x, float):
        return repr(x)
    if isinstance(x, int):
        return str(x) if -16 <= x <= 64 else hex(x & 0xffffffff)
    return str(x)

def mfma(d, a, b, c):
    return Ins(f"v_mfma_f32_16x16x32_bf16 {d}, {a}, {b}, {fmt(c)}", "mfma", d.regs(), a.regs() + b.regs() + _regs(c),
               extra=dict(d=d.regs(), ab=a.regs() + b.regs(), c=_regs(c)))
def valu(op, d, *src, rmw=False, mods=""):
    kind = "trans" if op in TRANS else "valu"
    uses = [r for s in src for r in _regs(s)]
    if rmw: uses += _regs(d)
    return Ins(f"{op} {d}, " + ", ".join(fmt(s) for s in src) + mods, kind, _regs(d), uses)
def vcmp(op, d, a, b):
    return Ins(f"{op} {d}, {fmt(a)}, {fmt(b)}", "valu", _regs(d), _regs(a) + _regs(b))
def permlane(op, a, b):
    return Ins(f"{op} {a}, {b}", "permlane", a.regs() + b.regs(), a.regs() + b.regs())
def readfirstlane(d, s):
    return Ins(f"v_readfirstlane_b32 {d}, {s}", "rdlane", d.regs(), s.regs())
def accrd(d, s): return Ins(f"v_accvgpr_read_b32 {d}, {s}", "valu", d.regs(), s.regs())
def accwr(d, s): return Ins(f"v_accvgpr_write_b32 {d}, {fmt(s)}", "valu", d.regs(), _regs(s))
def salu(op, d, *src, scc=True):
    defs = _regs(d) + (["scc"] if scc and not op.startswith("s_mov") and not op.startswith("s_cselect") and not op.startswith("s_mul") else [])
    uses = [r for s in src for r in _regs(s)]
    if op.startswith("s_cselect") or op.startswith("s_addc") or op.startswith("s_subb"): uses.append("scc")
    return Ins(f"{op} {d}, " + ", ".join(fmt(s) for s in src), "salu", defs, uses)
def scmp(op, a, b):
    return Ins(f"{op} {fmt(a)}, {fmt(b)}", "salu", ["scc"], _regs(a) + _regs(b))
def sload(d, base, off):
    n = {1: "dword", 2: "dwordx2", 4: "dwordx4", 8: "dwordx8", 16: "dwordx16"}[d.n]
    return Ins(f"s_load_{n} {d}, {base}, {off}", "smem", d.regs(), base.regs())
def ds_read(d, addr, off=0, tr=False):
    op = "ds_read_b64_tr_b16" if tr else {1: "ds_read_b32", 2: "ds_read_b64", 4: "ds_read_b128"}[d.n]
    assert 0 <= off < 65536, off
    return Ins(f"{op} {d}, {addr}" + (f" offset:{off}" if off else ""), "ds_read", d.regs(), addr.regs())
def ds_write(addr, s, off=0):
    op = {1: "ds_write_b32", 2: "ds_write_b64", 4: "ds_write_b128"}[s.n]
    assert 0 <= off < 65536, off
    return Ins(f"{op} {addr}, {s}" + (f" offset:{off}" if off else ""), "ds_write", [], addr.regs() + s.regs())
def bload(d, voff, srd, soff=0, off=0, flags="", tag=None):
    op = {1: "buffer_load_dword", 2: "buffer_load_dwordx2", 4: "buffer_load_dwordx4"}[d.n]
    assert 0 <= off < 4096, off
    return Ins(f"{op} {d}, {voff}, {srd}, {fmt(soff)} offen" + (f" offset:{off}" if off else "") + (" " + flags if flags else ""),
               "vload", d.regs(), voff.regs() + srd.regs() + _regs(soff), tag=tag)
def dma(voff, srd, soff=0, off=0, flags="", tag=None):
    assert 0 <= off < 4096, off
    return Ins(f"buffer_load_dwordx4 {voff}, {srd}, {fmt(soff)} offen" + (f" offset:{off}" if off else "") + (" " + flags if flags else "") + " lds",
               "dma", [], voff.regs() + srd.regs() + _regs(soff) + ["m0"], tag=tag)
def bstore(s, voff, srd, soff=0, off=0, flags="", tag=None):
    op = {1: "buffer_store_dword", 2: "buffer_store_dwordx2", 4: "buffer_store_dwordx4"}[s.n]
    assert 0 <= off < 4096, off
    return Ins(f"{op} {s}, {voff}, {srd}, {fmt(soff)} offen" + (f" offset:{off}" if off else "") + (" " + flags if flags else ""),
               "vstore", [], s.regs() + voff.regs() + srd.regs() + _regs(soff), tag=tag, extra=dict(data=s.regs() if s.n >= 3 else []))
def raw(text, kind="salu", defs=(), uses=(), tag=None):
    return Ins(text, kind, defs, uses, tag=tag)
def nop(n=0): return Ins(f"s_nop {n}", "nop", extra=n + 1)
def barrier(): return Ins("s_barrier", "barrier")
def label(name): return Ins(f"{name}:", "label")
def branch(op, target): return Ins(f"{op} {target}", "branch", [], ["scc"] if "scc" in op else (["vcc"] if "vcc" in op else []))
def wslot(): return Ins("", "wslot")
def wait(vm=None, lgkm=None):
    i = Ins("", "wslot"); i.req_v = vm; i.req_l = lgkm; i.extra = "hard"; return i
def wait_tag(tags, lgkm=None):
    i = Ins("", "wslot"); i.extra = ("tag", list(tags)); i.req_l = lgkm; return i
def mark(name): return Ins(f"{name}:", "label", extra="mark")
def comment(t): return Ins(f"; {t}", "label")

class Loop:
    def __init__(self, body, reps=3):
        self.body, self.reps = body, reps

def flatten_trace(prog):
    out = []
    for x in prog:
        if isinstance(x, Loop):
            for _ in range(x.reps): out += flatten_trace(x.body)
        elif isinstance(x, list): out += flatten_trace(x)
        else: out.append(x)
    return out
def flatten_static(prog):
    out = []
    for x in prog:
        if isinstance(x, Loop): out += flatten_static(x.body)
        elif isinstance(x, list): out += flatten_static(x)
        else: out.append(x)
    return out

def _setmin(obj, attr, n):
    cur = getattr(obj, attr)
    setattr(obj, attr, n if cur is None else min(cur, n))

def insert_waits(trace):
    lq = []
    vq = []
    lseq = vseq = 0
    slots = []
    last_tag = {}
    smem_pending = set()
    def apply(slot):
        nonlocal lq, vq
        ins, ls, vs = slot
        if ins.req_l is not None:
            lq = [e for e in lq if e[0] >= ls - ins.req_l]
            if ins.req_l == 0: smem_pending.clear()
        if ins.req_v is not None:
            vq = [e for e in vq if e[0] >= vs - ins.req_v]
    for ins in trace:
        if ins.kind == "wslot":
            if isinstance(ins.extra, tuple) and ins.extra[0] == "tag":
                seqs = [last_tag[t] for t in ins.extra[1] if t in last_tag]
                if seqs:
                    _setmin(ins, "req_v", min(63, vseq - max(seqs) - 1))
            slots.append((ins, lseq, vseq))
            apply(slots[-1])
            continue
        if ins.kind in ("label", "branch"):
            if ins.kind == "branch" or (ins.text.endswith(":") and ins.extra != "mark"): slots = []
            if ins.kind == "label": continue
        touched = set(ins.uses) | set(ins.defs)
        assert not (touched & smem_pending), f"SMEM result used without wait: {ins.text}"
        for q, attr, mx, idx in ((lq, "req_l", 15, 1), (vq, "req_v", 63, 2)):
            need = [e[0] for e in q if touched & e[1]]
            if need:
                s = max(need)
                cand = [sl for sl in slots if sl[idx] > s]
                if cand:
                    sl = cand[-1]
                    _setmin(sl[0], attr, min(mx, sl[idx] - s - 1))
                    apply(sl)
                else:
                    cur = lseq if idx == 1 else vseq
                    _setmin(ins, attr, min(mx, cur - s - 1))
                    apply((ins, lseq, vseq))
        if ins.req_l is not None or ins.req_v is not None:
            apply((ins, lseq, vseq))
        if ins.kind in ("ds_read", "ds_write"):
            lq.append((lseq, set(ins.defs))); lseq += 1
        elif ins.kind in ("vload", "dma", "vstore", "vatomic"):
            vq.append((vseq, set(ins.defs), ins.tag))
            if ins.tag is not None: last_tag[ins.tag] = vseq
            vseq += 1
        elif ins.kind == "smem":
            smem_pending |= set(ins.defs)

def _wait_text(i):
    p = []
    if i.req_v is not None: p.append(f"vmcnt({i.req_v})")
    if i.req_l is not None: p.append(f"lgkmcnt({i.req_l})")
    return "s_waitcnt " + " ".join(p) if p else None

def check_hazards(trace, fix=True, warn=None):
    VAL = ("valu", "trans", "permlane", "rdlane")
    changed = True
    total_fix = 0
    while changed:
        changed = False
        pos = 0
        last = {}
        for ins in trace:
            if ins.kind == "label": continue
            if ins.kind == "wslot":
                if _wait_text(ins): pos += 1
                continue
            p = pos + ins.pre_nop + (1 if _wait_text(ins) else 0)
            need = 0
            def chk(cls, regs, ws):
                nonlocal need
                for r in regs:
                    q = last.get((cls, r))
                    if q is not None:
                        short = ws - (p - q - 1)
                        if short > need: need = short
            k = ins.kind
            vuses = [r for r in ins.uses if r[0] in "va" and r != "vcc"]
            vdefs = [r for r in ins.defs if r[0] in "va" and r != "vcc"]
            suses = [r for r in ins.uses if (r[0] == "s" and r != "scc") or r == "vcc"]
            if k == "mfma":
                chk("valu_w", vuses, 2)
                chk("mfma_d", ins.extra["ab"], 8)
                for r in ins.extra["c"]:
                    q = last.get(("mfma_d", r))
                    if q is not None and last.get(("mfma_dt", r)) != tuple(ins.extra["c"]):
                        short = 6 - (p - q - 1)
                        need = max(need, short)
                if ins.extra["c"] != ins.extra["d"]:
                    chk("mfma_d", ins.extra["d"], 6)
                chk("exec_w", ["exec"], 4)
            if k in VAL:
                chk("mfma_d", vuses + vdefs, 8)
                chk("mfma_c", vdefs, 3)
                chk("store_data", vdefs, 2)
                chk("valu_sw", suses, 2)
                if k != "trans": chk("trans_w", vuses, 1)
                if k == "permlane": chk("valu_w", vuses, 2)
                if k == "rdlane": chk("valu_w", vuses, 1)
            if k in ("ds_read", "ds_write", "vload", "dma", "vstore", "vatomic"):
                chk("mfma_d", vuses + vdefs, 8)
                chk("store_data", vdefs, 1)
                chk("trans_w", vuses, 1)
                if k not in ("ds_read", "ds_write"): chk("valu_sw", suses, 5)
                if k == "dma": chk("m0_w", ["m0"], 1)
            if k in ("salu", "branch"):
                chk("valu_sw", suses, 1)
            if need > 0:
                if not fix: raise RuntimeError(f"hazard before {ins.text}: short {need}")
                ins.pre_nop += need; changed = True; total_fix += 1
                if warn: warn(f"s_nop x{need} inserted before: {ins.text}")
                p += need
            if k == "mfma":
                for r in ins.extra["d"]:
                    last[("mfma_d", r)] = p; last[("mfma_dt", r)] = tuple(ins.extra["d"])
                for r in ins.extra["c"]: last[("mfma_c", r)] = p
            if k in VAL:
                for r in vdefs:
                    last[("valu_w", r)] = p
                    if k == "trans": last[("trans_w", r)] = p
                    else: last.pop(("trans_w", r), None)
                    last.pop(("mfma_d", r), None)
                for r in ins.defs:
                    if (r[0] == "s" and r != "scc") or r == "vcc": last[("valu_sw", r)] = p
                    if r == "exec": last[("exec_w", "exec")] = p
            if k == "salu" and "m0" in ins.defs: last[("m0_w", "m0")] = p
            if k == "vstore":
                for r in ins.extra["data"]: last[("store_data", r)] = p
            pos = p + (ins.extra if k == "nop" else 1)
    return total_fix

def emit(static):
    out = []
    for i in static:
        if i.kind == "wslot":
            t = _wait_text(i)
            if t: out.append("    " + t)
            continue
        t = _wait_text(i)
        if t: out.append("    " + t)
        n = i.pre_nop
        while n > 0:
            k = min(n, 16); out.append(f"    s_nop {k-1}"); n -= k
        out.append(i.text if i.kind == "label" else "    " + i.text)
    return out

def finalize(prog, warn=None):
    tr = flatten_trace(prog)
    insert_waits(tr)
    insert_waits(tr)
    check_hazards(tr, warn=warn)
    return emit(flatten_static(prog))

class Gaps:
    def __init__(self, mfmas):
        self.m = list(mfmas)
        n = len(self.m)
        self.sc = [[] for _ in range(n)]; self.mem = [[] for _ in range(n)]; self.va = [[] for _ in range(n)]
        self.noslot = set()
    def __len__(self): return len(self.m)
    def s(self, g, *ins): self.sc[g] += ins
    def d(self, g, *ins): self.mem[g] += ins
    def v(self, g, *ins): self.va[g] += ins
    def cost(self, g):
        c = 0
        for i in self.mem[g]: c += 12 if i.kind in ("dma", "vload", "vstore") else 4
        for i in self.va[g]: c += 8 if i.kind == "trans" else 4
        return c
    def build(self):
        out = []
        for g, m in enumerate(self.m):
            out.append(m)
            if g not in self.noslot: out.append(wslot())
            out += self.sc[g] + self.mem[g] + self.va[g]
        return out

STAMP_BASE = 64
def stamp(cfg, i):
    if not cfg.get("stamps"): return []
    b = STAMP_BASE + 4 * i
    return [raw(f"s_memtime s[{b}:{b+1}]", "smem", [f"s{b}", f"s{b+1}"]), raw(f"s_memrealtime s[{b+2}:{b+3}]", "smem", [f"s{b+2}", f"s{b+3}"]), wait(lgkm=0)]
def stamp_dump(cfg, n, sWave, region):
    if not cfg.get("stamps"): return []
    o = []
    E = o.append
    E(sload(S(56, 2), S(0, 2), 96)); E(wait(lgkm=0, vm=0))
    E(salu("s_add_u32", S(56), S(56), (128 << 20) + (region << 20))); E(salu("s_addc_u32", S(57), S(57), 0))
    E(salu("s_mov_b32", S(58), 1 << 20)); E(salu("s_mov_b32", S(59), 0x00020000))
    E(salu("s_lshl_b32", S(60), S(2), 2)); E(salu("s_add_u32", S(60), S(60), sWave)); E(salu("s_lshl_b32", S(60), S(60), 7))
    E(valu("v_mov_b32", V(2), 0))
    for i in range(n):
        b = STAMP_BASE + 4 * i
        E(valu("v_mov_b32", V(4), S(b))); E(valu("v_mov_b32", V(5), S(b + 2)))
        E(bstore(V(4, 2), V(2), S(56, 4), S(60), 8 * i))
        E(wait(vm=0))
    return o

_MF = re.compile(r"^\s*v_mfma_f32_16x16x32_bf16 ([va])\[(\d+):\d+\], ([va])\[(\d+):\d+\], ([va])\[(\d+):\d+\], (?:([va])\[(\d+):\d+\]|0)$")
_TR = re.compile(r"^\s*ds_read_b64_tr_b16 a\[(\d+):\d+\], v(\d+)(?: offset:(\d+))?$")
_B128 = re.compile(r"^\s*ds_read_b128 a\[(\d+):\d+\], v(\d+)(?: offset:(\d+))?$")
def compact(lines):
    used = {}
    out = []
    for l in lines:
        m = _MF.match(l)
        if m:
            dk, d, ak, a, bk, b, ck, c = m.groups()
            if ck is None: name = f"Z{dk}{ak}{bk}"; args = f"{d},{a},{b}"; cs = "0"
            elif c == d: name = f"M{dk}{ak}{bk}"; args = f"{d},{a},{b}"; cs = f"{dk}[\\d:\\d+3]"
            else: name = f"C{dk}{ak}{bk}"; args = f"{d},{a},{b},{c}"; cs = f"{dk}[\\c:\\c+3]"
            used[name] = (f".macro {name} d,a,b" + (",c" if name[0] == "C" else ""),
                          f"v_mfma_f32_16x16x32_bf16 {dk}[\\d:\\d+3], {ak}[\\a:\\a+3], {bk}[\\b:\\b+3], {cs}", ".endm")
            out.append(f"{name} {args}"); continue
        m = _TR.match(l)
        if m:
            used["TR"] = (".macro TR d,v,o", "ds_read_b64_tr_b16 a[\\d:\\d+1], v\\v offset:\\o", ".endm")
            out.append(f"TR {m.group(1)},{m.group(2)},{m.group(3) or 0}"); continue
        m = _B128.match(l)
        if m:
            used["RD"] = (".macro RD d,v,o", "ds_read_b128 a[\\d:\\d+3], v\\v offset:\\o", ".endm")
            out.append(f"RD {m.group(1)},{m.group(2)},{m.group(3) or 0}"); continue
        out.append(l.strip())
    macros = [x for k in sorted(used) for x in used[k]]
    return macros, out

class Stamper:
    def __init__(self, cfg, vreg=39):
        self.on = bool(cfg.get("st2")); self.v = vreg; self.n = 0; self.pend = None; self.names = []
    def __call__(self, name, hard=False):
        if not self.on: return []
        o = []
        if hard: o.append(wait(lgkm=0))
        if self.pend is not None:
            o.append(raw(f"v_writelane_b32 v{self.v}, s64, {self.pend}", "valu", [f"v{self.v}"], ["s64", f"v{self.v}"]))
        o.append(raw("s_memtime s[64:65]", "smem", ["s64", "s65"]))
        self.pend = self.n; self.n += 1; self.names.append(name)
        assert self.n <= 60
        return o
    def start(self):
        if not self.on: return []
        return [raw("s_memrealtime s[66:67]", "smem", ["s66", "s67"])]
    def dump(self, sWave):
        if not self.on: return []
        o = [wait(lgkm=0, vm=0)]
        E = o.append
        E(raw(f"v_writelane_b32 v{self.v}, s64, {self.pend}", "valu", [f"v{self.v}"], ["s64", f"v{self.v}"]))
        E(raw("s_memtime s[64:65]", "smem", ["s64", "s65"])); E(raw("s_memrealtime s[68:69]", "smem", ["s68", "s69"]))
        E(sload(S(56, 2), S(0, 2), 96)); E(wait(lgkm=0))
        E(raw(f"v_writelane_b32 v{self.v}, s64, {self.n}", "valu", [f"v{self.v}"], ["s64", f"v{self.v}"]))
        E(raw(f"v_writelane_b32 v{self.v}, s66, 62", "valu", [f"v{self.v}"], ["s66", f"v{self.v}"]))
        E(raw(f"v_writelane_b32 v{self.v}, s68, 63", "valu", [f"v{self.v}"], ["s68", f"v{self.v}"]))
        self.names.append("end")
        E(salu("s_add_u32", S(56), S(56), 128 << 20)); E(salu("s_addc_u32", S(57), S(57), 0))
        E(salu("s_mov_b32", S(58), 1 << 20)); E(salu("s_mov_b32", S(59), 0x00020000))
        E(salu("s_lshl_b32", S(60), S(2), 2)); E(salu("s_add_u32", S(60), S(60), sWave)); E(salu("s_lshl_b32", S(60), S(60), 8))
        E(valu("v_lshlrev_b32", V(2), 2, V(1)))
        E(bstore(V(self.v), V(2), S(56, 4), S(60), 0))
        E(wait(vm=0))
        return o
```

```python
from asmlib import *
import math, struct

KNAME = "concat_heads__mha_block_cached__gqa_block_cached__near_ridge_kernel"
HU = 8448; U = 2 * HU; NU = 9
K0_OFF = NU * U
XR = U
QSCALE = math.log2(math.e) / math.sqrt(128.0)
def f32bits(x): return struct.unpack("<I", struct.pack("<f", x))[0]
LMAX = 2.0 ** 16
WS_XCH = 32 << 20
WS_INB = 12 << 20
SPIN_MAX = 200000

def wq_unit(j): return (4 + (j + 3) % 5) * U
def t_unit(t): return (t % NU) * U

class K:
    SRD_X = S(4, 4); SRD_WQ = S(8, 4); SRD_K = S(12, 4); SRD_V = S(16, 4); SRD_O = S(20, 4)
    SRD_WO = S(24, 4); SRD_OUT = S(28, 4); SRD_XC = S(32, 4); SRD_DB = S(36, 4)
    sWave = S(40); sT = S(41); sT2 = S(42); sCnt = S(43); sOff = S(44); sWqM0 = S(45); sXM0 = S(46)
    sRd = S(47); sWr = S(48); sWrV = S(49); sKOff = S(50); sVOff = S(51); sWvK = S(52); sWvV = S(53)
    sScale = S(54, 2); sOSt = S(56); sOLd = S(57); sGrp = S(58); sXMine = S(59); sXPart = S(60)
    sInMine = S(61); sInPart = S(62); sOff2 = S(63); sOff3 = S(3)
    vLane = V(1); t0 = V(2); t1 = V(3); t2 = V(4); t3 = V(5)
    vDWQ = V(6, 4); vWO = V(10, 2); vWb = V(13); vW = V(14)
    vKb = V(15); vK = V(16); vVb = V(17); vV = V(18)
    vOL = [V(20), V(12), V(21)]; vOut = V(22)
    ONES = V(24, 4); vSig = V(28); vOne = V(29); vPoll = V(30); vDK = V(31); TM = V(32, 8)
    MREF = 40; LACC = 52
    vXD = V(40, 6); vXRd = V(46, 2)
    vDump = [V(0), V(23), V(19)]
    vDum = V(224); vWT = V(225); vCT = V(226); vPg = V(227)
    ACC = 64; Q = 64; SP = 112; OACC = 160
    XB = 0; WF = 48; Q1 = 80; PF = 128; KF = 0; VF = 32
    @staticmethod
    def acc(dt, qt, NT): return V(K.ACC + 8 * ((dt >> 1) * NT + qt) + 4 * (dt & 1), 4)
    @staticmethod
    def xb(buf, qt): return A(K.XB + 12 * (buf & 3) + 4 * qt, 4)
    @staticmethod
    def wf(f): return A(K.WF + 4 * (f & 7), 4)
    @staticmethod
    def q0(s, qt, NT): return V(K.Q + 4 * (s * NT + qt), 4)
    @staticmethod
    def q1(s, qt, NT): return A(K.Q1 + 4 * (s * NT + qt), 4)
    @staticmethod
    def sp(par, qt): return V(K.SP + 24 * par + 8 * qt, 8)
    @staticmethod
    def mref(qt): return V(K.MREF + 4 * qt, 4)
    @staticmethod
    def lacc(qt): return V(K.LACC + 4 * qt, 4)
    @staticmethod
    def oacc(dt, qt, NT): return V(K.OACC + 8 * ((dt >> 1) * NT + qt) + 4 * (dt & 1), 4)
    @staticmethod
    def kf(kt, s): return A(K.KF + 16 * kt + 4 * s, 4)
    @staticmethod
    def vf(dt): return A(K.VF + 4 * dt, 4)
    @staticmethod
    def acc4(j, qt, NT): return V(K.ACC + 4 * (j * NT + qt), 4)
    @staticmethod
    def wf4(i): return A(4 * (i & 7), 4)
    @staticmethod
    def ob(u, e, qt):
        b = u & 7
        base = 128 + 24 * b if b < 5 else (80 + 24 * (b - 5) if b < 7 else 32)
        return A(base + 12 * e + 4 * qt, 4)

def NPRE(NT): return 6 if NT == 3 else 7

def place_vm(G, vm, free):
    assert len(vm) <= len(free), (len(vm), len(free))
    for (pre, d), g in zip(vm, free):
        if pre:
            if g == 0 or (g - 1) in G.noslot: G.d(g, *pre)
            else:
                G.s(g - 1, *[x for x in pre if x.kind == "salu"]); G.v(g - 1, *[x for x in pre if x.kind != "salu"])
        G.d(g, d); G.noslot.add(g)

def wread(f, h):
    d = K.wf(f)
    off = h * 512 + (f >> 3) * 256 + ((f >> 1) & 3) * 64 + (f & 1) * 8
    return ds_read(d[2 * h:2 * h + 2], K.vW, off, tr=True)

def wq_ops(j, cfg):
    ops = []
    for p in range(4):
        i, e2 = p >> 1, p & 1
        pre = [salu("s_add_u32", "m0", K.sWqM0, wq_unit(j) + i * 2056 + e2 * 1024)]
        if p == 0: pre = [salu("s_mov_b32", K.sOff, j * 32 * 8192)] + pre
        ops.append((pre, dma(K.vDWQ[p], K.SRD_WQ, K.sOff, 0, cfg["wq_flags"], tag=("wq", j))))
    return ops
def x_ops(p, NT, cfg):
    ops = []
    for qt in range(NT):
        for hh in range(2):
            lds = (p & 1) * NT * 2048 + qt * 2048 + hh * 1024 - p * 128
            ops.append(([salu("s_add_u32", "m0", K.sXM0, lds)], dma(K.vXD[2 * qt + hh], K.SRD_X, 0, p * 128, cfg["x_flags"], tag=("x", p))))
    return ops
def x_reads(p, NT):
    return [ds_read(K.xb(2 * p + e, qt), K.vXRd[e], (p & 1) * NT * 2048 + qt * 2048) for e in range(2) for qt in range(NT)]
def k0_ops(cfg):
    return [([salu("s_add_u32", "m0", K.sWvK, K0_OFF + p * 800)], dma(K.vDK, K.SRD_K, 0, p * 256, cfg["kv_flags"])) for p in range(2)]
def pfreg(slot, p): return A(K.PF + 16 * slot + 4 * p, 4)
def kv_piece(t, p, cfg, slot=None):
    is_v = p >= 2
    srd_ = K.SRD_V if is_v else K.SRD_K
    pre = [salu("s_mov_b32", K.sOff3, (t if is_v else t + 1) * 8192)] if p in (0, 2) else []
    if slot is not None:
        return (pre, bload(pfreg(slot, p), K.vDK, srd_, K.sOff3, (p & 1) * 256, cfg["kv_flags"]))
    pre = pre + [salu("s_add_u32", "m0", K.sWvK, t_unit(t) + (p >> 1) * HU + (p & 1) * 800)]
    return (pre, dma(K.vDK, srd_, K.sOff3, (p & 1) * 256, cfg["kv_flags"], tag=("t", t)))
def dump_ops(t, slot):
    ops = []
    for p in range(4):
        a = t_unit(t) + (p >> 1) * HU + (p & 1) * 1056
        ops.append(ds_write(K.vDump[a // 57344], pfreg(slot, p), a % 57344))
    return ops

def qproj_step(j, NT, cfg, extra_vm=(), dumps=(), post_bar=()):
    G = Gaps([mfma(K.acc(f, qt, NT), K.wf(f), K.xb(j, qt), K.acc(f, qt, NT) if j else 0) for f in range(16) for qt in range(NT)])
    sy = 12 * NT - 1
    if NT == 3:
        for f in range(6, 16):
            g = 3 * (f - 6)
            G.d(g, wread(f, 0)); G.d(g + 1, wread(f, 1))
        free = list(range(2, 30, 3)) + [31, 33, 30, 32]
    else:
        for f in range(7, 16):
            G.d(2 * (f - 7), wread(f, 0), wread(f, 1))
        free = list(range(1, 22, 2)) + [18, 20, 31]
    if j < 31:
        G.s(sy, wait_tag([("wq", j + 1)], lgkm=0), barrier(), *post_bar); G.noslot.add(sy)
        G.v(sy - 1, valu("v_add_u32", K.vW, wq_unit(j + 1), K.vWb))
        g = sy + 1
        for f in range(NPRE(NT)):
            if NT == 3: G.d(g, wread(f, 0)); G.d(g + 1, wread(f, 1)); g += 2
            else: G.d(g, wread(f, 0), wread(f, 1)); g += 1
    else:
        G.s(sy, wait(lgkm=0), barrier(), *post_bar); G.noslot.add(sy)
    vm = []
    if j + 4 < 32: vm += wq_ops(j + 4, cfg)
    if j % 2 == 0 and j // 2 + 2 < 16: vm += x_ops(j // 2 + 2, NT, cfg)
    vm += list(extra_vm)
    dsx = []
    if j % 2 == 1 and (j + 1) // 2 < 16: dsx = x_reads((j + 1) // 2, NT)
    dsx = list(dumps) + dsx
    nfree = sorted(free[:max(len(vm) + len(dsx), 0)]) if len(vm) + len(dsx) <= len(free) else sorted(free)
    gv = nfree[:len(vm)]
    gd = nfree[len(vm):]
    place_vm(G, vm, gv)
    gd = [g for g in gd if g < sy] or [sy - 2]
    first_x = True
    for k_, d in enumerate(dsx):
        g = gd[min(k_ * len(gd) // len(dsx), len(gd) - 1)]
        if d.kind == "ds_read" and first_x:
            G.s(g, wait_tag([("x", (j + 1) // 2)])); first_x = False
        G.d(g, d)
    return G.build()

def kread(kt, s): return ds_read(K.kf(kt, s), K.vK, kt * 512 + s * 64)
def vread(dt, h):
    d = K.vf(dt)
    return ds_read(d[2 * h:2 * h + 2], K.vV, HU + h * 512 + dt * 32, tr=True)
def exps(par, kt, NT):
    return [valu("v_exp_f32", K.sp(par, qt)[4 * kt + r], K.sp(par, qt)[4 * kt + r]) for qt in range(NT) for r in range(4)]
def cvts(par, NT):
    o = []
    for qt in range(NT):
        s = K.sp(par, qt)
        o += [valu("v_cvt_pk_bf16_f32", s[3], s[2], s[3]), valu("v_cvt_pk_bf16_f32", s[2], s[0], s[1]),
              valu("v_cvt_pk_bf16_f32", s[4], s[4], s[5]), valu("v_cvt_pk_bf16_f32", s[5], s[6], s[7])]
    return o
def pfrag(par, qt): return K.sp(par, qt)[2:6]
def qk_mfmas(par, NT, cinit, qsrc, kfrag=None):
    o = []
    kfrag = kfrag or K.kf
    for kt in range(2):
        for s in range(4):
            for qt in range(NT):
                d = K.sp(par, qt)[4 * kt:4 * kt + 4]
                c = d if s else (K.mref(qt) if cinit else 0)
                o.append(mfma(d, kfrag(kt, s), qsrc(s, qt, NT), c))
    return o
def pv_mfmas(par, NT, first):
    o = []
    for dt in range(8):
        for qt in range(NT):
            d = K.oacc(dt, qt, NT)
            o.append(mfma(d, K.vf(dt), pfrag(par, qt), 0 if first else d))
    for qt in range(NT):
        o.append(mfma(K.lacc(qt), K.ONES, pfrag(par, qt), 0 if first else K.lacc(qt)))
    return o

def ks0(u): return 8 * ((u >> 1) & 7) + 4 * (u >> 4) + 2 * (u & 1)
def wo_ops(u, cfg):
    ops = []
    for p in range(4):
        hv, i = p >> 1, p & 1
        pre = [salu("s_add_u32", "m0", K.sWvK, t_unit(32 + u) + hv * HU + i * 1056)]
        if i == 0: pre = [salu("s_mov_b32", K.sKOff, (ks0(u) + hv) * 65536)] + pre
        ops.append((pre, dma(K.vWO[i], K.SRD_WO, K.sKOff, 0, cfg["wo_flags"], tag=("t", 32 + u))))
    return ops
def o_ops(u, NT, cfg):
    ops = []
    for qt in range(NT):
        for e in range(2):
            pre = [salu("s_add_u32", K.sVOff, K.sOLd, ks0(u) * 1024)] if (qt, e) == (0, 0) else []
            ops.append((pre, bload(K.ob(u, e, qt), K.vOL[qt], K.SRD_O, K.sVOff, e * 1024, cfg["o_ld_flags"])))
    return ops
def wo_touch(m):
    d = bload(K.vDum, K.vWT, K.SRD_WO, K.sOff2, 0, ""); d.defs = []
    return ([salu("s_mov_b32", K.sOff2, (16 * (m & 3) + 4 * (m >> 2)) * 65536)], d)
def code_touch(names):
    o = []
    for nm in names:
        o.append(([valu("v_add_u32", K.vCT, f"(({nm}-f_start+4095)&0xfffff000)", K.vPg)],
                  raw(f"global_load_dword {K.vDum}, {K.vCT}, s[98:99]", "vload", [], K.vCT.regs() + ["s98", "s99"])))
    return o

def xlane(op, dst, tmp):
    return [valu("v_mov_b32", tmp, dst), permlane("v_permlane32_swap_b32", tmp, dst), valu(op, dst, tmp, dst),
            valu("v_mov_b32", tmp, dst), permlane("v_permlane16_swap_b32", tmp, dst), valu(op, dst, tmp, dst)]
def interleave(lists):
    out = []
    for i in range(max(len(l) for l in lists)):
        for l in lists:
            if i < len(l): out.append(l[i])
    return out
def newhead_ops(par, NT):
    a, b = [], []
    for qt in range(NT):
        s = K.sp(par, qt); m = K.TM[qt]; t = K.TM[4 + qt]
        a.append([valu("v_max3_f32", m, s[0], s[1], s[2]), valu("v_max_f32", m, s[3], m)])
        l = [valu("v_max3_f32", m, m, s[4], s[5]), valu("v_max3_f32", m, m, s[6], s[7])]
        l += xlane("v_max_f32", m, t)
        l += [valu("v_sub_f32", K.mref(qt)[r], 0, m) for r in range(4)]
        l += [valu("v_sub_f32", s[r], s[r], m) for r in range(8)]
        l += [valu("v_exp_f32", s[r], s[r]) for r in range(8)]
        b.append(l)
    return interleave(a), interleave(b)

def attn_iter(i, NT, cfg, qsrc, first=False, newhead=False, vm=(), cert=(), post_bar=(), pre_bar=()):
    i_par = i & 1; pn = i_par ^ 1
    G = Gaps(qk_mfmas(pn, NT, not newhead, qsrc) + pv_mfmas(i_par, NT, first))
    n = len(G); nA = 4 * NT; nC = 8 * NT
    dsA = [kread(1, s) for s in range(4)] + [vread(dt, h) for dt in range(4) for h in range(2)]
    cv = cvts(i_par, NT)
    rest = []
    if newhead:
        na, nb = newhead_ops(pn, NT)
        e0 = [[x] for x in na] + [[] for _ in range(4 * NT - len(na))]
        e1 = [nb[2 * k_:2 * k_ + 2] for k_ in range(4 * NT)]
        rest = nb[8 * NT:]
    else:
        e0 = [[x] for x in exps(pn, 0, NT)]; e1 = [[x] for x in exps(pn, 1, NT)]
    dsC = [vread(dt, h) for dt in range(4, 8) for h in range(2)]
    ops = list(vm)
    upd = [valu("v_add_u32", K.vK, t_unit(i + 1), K.vKb), valu("v_add_u32", K.vV, t_unit(i + 1), K.vVb)]
    bw = wait_tag([("t", i + 1)] + list(cert), lgkm=0)
    used = set()
    def put(g, op):
        pre, d = op
        sc = [x for x in pre if x.kind == "salu"]; ot = [x for x in pre if x.kind != "salu"]
        if (g - 1) in used or g in used: G.mem[g] += pre + [d]
        else:
            G.s(g - 1, *sc); G.v(g - 1, *ot); G.mem[g].insert(0, d)
        G.noslot.add(g); used.add(g)
    if NT == 3:
        for g in range(12): G.d(g, dsA[g]); G.v(g, cv[g])
        for k_, e in enumerate(e0): G.v(nA + k_, *e)
        if len(ops) <= 3:
            plan = ["dd", "e", "m", "e", "dd", "e", "m", "e", "dd", "e", "m", "e", "dd", "e", "e", "e", "u", "e", "B", "k", "e", "k", "e", "k", "k", "", ""]
        else:
            plan = ["dd", "e", "m", "e", "dd", "e", "m", "e", "dd", "e", "m", "e", "dd", "e", "m", "e", "u", "e", "B", "kk", "e", "kk", "m", "e", "m", "e", "m"]
        mg = [nC + k_ for k_, p in enumerate(plan) if p == "m"]
        over = len(ops) - len(mg)
        if over > 0: mg = [nA + 1 + 2 * k_ for k_ in range(over)] + mg
        assert over <= 5
        for g, op in zip(mg, ops): put(g, op)
        ei = di = ki = 0
        for k_, p in enumerate(plan):
            g = nC + k_
            if p == "dd": G.d(g, dsC[di], dsC[di + 1]); di += 2; G.noslot.add(g)
            elif p == "e": G.v(g, *e1[ei]); ei += 1
            elif p == "u": G.v(g, *upd)
            elif p == "B": G.s(g, *pre_bar, bw, barrier(), *post_bar); G.noslot.add(g)
            elif p == "k": G.d(g, kread(0, ki)); ki += 1
            elif p == "kk": G.d(g, kread(0, ki), kread(0, ki + 1)); ki += 2
        assert (ei, di, ki) == (12, 8, 4), (ei, di, ki)
    else:
        for g in range(8): G.d(g, dsA[g]); G.v(g, cv[g])
        for k_, g in enumerate(range(8, 12)): G.d(g, dsA[8 + k_])
        for k_, e in enumerate(e0): G.v(nA + k_, *e)
        mg = [1 + 2 * k_ for k_ in range(12)] + [32, 33]
        assert len(ops) <= len(mg), len(ops)
        if len(ops) <= 8: mg = [9, 11, 13, 15, 17, 19, 21, 23]
        for g, op in zip(mg, ops): put(g, op)
        plan = ["dd", "e", "dd", "e", "dd", "e", "dd", "e", "e", "u", "e", "B", "k", "k", "ke", "ke", "", ""]
        ei = di = ki = 0
        for k_, p in enumerate(plan):
            g = nC + k_
            if p == "dd": G.d(g, dsC[di], dsC[di + 1]); di += 2
            elif p == "u": G.v(g, *upd)
            elif p == "B": G.s(g, *pre_bar, bw, barrier(), *post_bar); G.noslot.add(g)
            else:
                if "k" in p: G.d(g, kread(0, ki)); ki += 1
                if "e" in p: G.v(g, *e1[ei]); ei += 1
        assert (ei, di, ki) == (8, 8, 4), (ei, di, ki)
    return G.build() + rest

def epilogue(NT, cfg, lbl, head):
    o = []
    E = o.append
    E(salu("s_mov_b32", K.sT, f32bits(LMAX)))
    E(valu("v_add_f32", K.t1, K.lacc(0)[0], K.lacc(1)[0]))
    if NT == 3: E(valu("v_add_f32", K.t1, K.lacc(2)[0], K.t1))
    E(vcmp("v_cmp_nge_f32", "vcc", K.sT, K.t1))
    for qt in range(NT): E(valu("v_rcp_f32", K.TM[2 * qt], K.lacc(qt)[0]))
    if not cfg.get("no_slow"): E(branch("s_cbranch_vccnz", f"{lbl}_slow{head}"))
    E(label(f"{lbl}_norm{head}"))
    st = []
    for qt in range(NT):
        for s in range(4):
            a = V(K.OACC + 8 * (s * NT + qt), 8)
            d = a[0:4] if head else V(K.Q + 4 * (s * NT + qt), 4)
            for r in range(0, 8, 2): E(valu("v_pk_mul_f32", a[r:r + 2], a[r:r + 2], K.TM[2 * qt:2 * qt + 2], mods=" op_sel_hi:[1,0]"))
            for r in range(4): E(valu("v_cvt_pk_bf16_f32", d[r], a[2 * r], a[2 * r + 1]))
            pre = [salu("s_add_u32", K.sOff, K.sOSt, head * 4096)] if (qt, s) == (0, 0) else []
            st.append((pre, bstore(d, K.vOL[qt], K.SRD_O, K.sOff, s * 1024, cfg["o_st_flags"], tag=("ost", head))))
    return o, st

def slow_path(NT, cfg, lbl, head):
    o = [label(f"{lbl}_slow{head}")]
    E = o.append
    qsrc = K.q1 if head else K.q0
    sC, sO = K.sT, K.sT2
    vKo = V(5); vVo = V(13); m = [V(2), V(3), V(4)]; fr = V(6, 4); vt = K.TM
    kfr = lambda kt, s: A(K.VF + 16 * kt + 4 * s, 4)
    E(wait(vm=0, lgkm=0))
    E(valu("v_and_b32", K.t0, 15, K.vLane)); E(valu("v_lshrrev_b32", K.t1, 4, K.vLane))
    E(valu("v_lshlrev_b32", vKo, 8, K.t0)); E(valu("v_lshl_add_u32", vKo, K.t1, 4, vKo))
    E(valu("v_lshlrev_b32", vVo, 10, K.t1)); E(valu("v_lshl_add_u32", vVo, K.t0, 1, vVo))
    for qt in range(NT): E(valu("v_mov_b32", m[qt], 0xff800000))
    def kload():
        l = []
        for kt in range(2):
            l.append(salu("s_add_u32", sO, sC, kt * 4096))
            for s in range(4): l.append(bload(kfr(kt, s), vKo, K.SRD_K, sO, s * 64))
        l.append(wait(vm=0))
        return l
    def nxt(t): return [salu("s_add_u32", sC, sC, 8192), scmp("s_cmp_lt_u32", sC, (head + 1) * 131072), branch("s_cbranch_scc1", t)]
    E(salu("s_mov_b32", sC, head * 131072))
    b = [label(f"{lbl}_s1{head}")] + kload() + qk_mfmas(1, NT, False, qsrc, kfr) + [nop(7)]
    for qt in range(NT):
        s = K.sp(1, qt)
        for r in range(0, 8, 2): b.append(valu("v_max3_f32", m[qt], m[qt], s[r], s[r + 1]))
    b += nxt(f"{lbl}_s1{head}")
    o.append(Loop(b, reps=2))
    for qt in range(NT):
        o += xlane("v_max_f32", m[qt], K.TM[0])
        for r in range(4): E(valu("v_mov_b32", K.lacc(qt)[r], 0))
    for r in range(32 * NT): E(valu("v_mov_b32", V(K.OACC + r), 0))
    E(salu("s_mov_b32", sC, head * 131072))
    b = [label(f"{lbl}_s2{head}")] + kload() + qk_mfmas(1, NT, False, qsrc, kfr) + [nop(7)]
    for qt in range(NT):
        for r in range(8): b.append(valu("v_sub_f32", K.sp(1, qt)[r], K.sp(1, qt)[r], m[qt]))
    b += exps(1, 0, NT) + exps(1, 1, NT) + cvts(1, NT)
    for dt in range(8):
        for h in range(2):
            b.append(salu("s_add_u32", sO, sC, h * 4096))
            for r in range(4):
                d = vt[4 * h + r]
                b.append(raw(f"buffer_load_ushort {d}, {vVo}, {K.SRD_V}, {sO} offen offset:{r * 256 + dt * 32}", "vload", d.regs(), vVo.regs() + K.SRD_V.regs() + sO.regs()))
        b.append(wait(vm=0))
        for r in range(4): b.append(valu("v_lshl_or_b32", fr[r], vt[2 * r + 1], 16, vt[2 * r]))
        for qt in range(NT): b.append(mfma(K.oacc(dt, qt, NT), fr, pfrag(1, qt), K.oacc(dt, qt, NT)))
        b.append(nop(7))
    for qt in range(NT): b.append(mfma(K.lacc(qt), K.ONES, pfrag(1, qt), K.lacc(qt)))
    b += [nop(7)] + nxt(f"{lbl}_s2{head}")
    o.append(Loop(b, reps=2))
    E(nop(7))
    for qt in range(NT): E(valu("v_rcp_f32", K.TM[2 * qt], K.lacc(qt)[0]))
    E(nop(1))
    E(branch("s_branch", f"{lbl}_norm{head}"))
    return o

def signal(off):
    return raw(f"buffer_atomic_add {K.vOne}, {K.vSig}, {K.SRD_DB}, {K.sGrp} offen offset:{off} sc1", "vatomic", [], K.vOne.regs() + K.vSig.regs() + K.SRD_DB.regs() + K.sGrp.regs())
def poll_issue(srd, soff, off, tag):
    return bload(K.vPoll, K.vSig, srd, soff, off, "sc1", tag=tag)
def poll_check(name, target):
    return [readfirstlane(K.sT, K.vPoll), scmp("s_cmp_lt_u32", K.sT, target), branch("s_cbranch_scc1", f"{name}_spin"), label(f"{name}_ok")]
def poll_spin(name, srd, soff, off, target):
    o = [label(f"{name}_spin"), salu("s_mov_b32", K.sT2, 0)]
    b = [label(f"{name}_l"), raw("s_sleep 4", "salu"), bload(K.vPoll, K.vSig, srd, soff, off, "sc1"), wait(vm=0), readfirstlane(K.sT, K.vPoll),
         salu("s_add_u32", K.sT2, K.sT2, 1), scmp("s_cmp_ge_u32", K.sT2, SPIN_MAX), branch("s_cbranch_scc1", f"{name}_ok"),
         scmp("s_cmp_lt_u32", K.sT, target), branch("s_cbranch_scc1", f"{name}_l")]
    o.append(Loop(b, reps=2))
    o.append(branch("s_branch", f"{name}_ok"))
    return o

def wread4(i, f, h):
    d = K.wf4(i)
    return ds_read(d[2 * h:2 * h + 2], K.vW, (f >> 3) * HU + h * 512 + (f & 7) * 32, tr=True)

def oproj_unit(u, NT, cfg, vm, cert, pre_bar=(), post_bar=(), nxt=None):
    G = Gaps([mfma(K.acc4(f & 7, qt, NT), K.wf4(f), K.ob(u, f >> 3, qt), K.acc4(f & 7, qt, NT) if (u or f >= 8) else 0) for f in range(16) for qt in range(NT)])
    sy = 12 * NT - 1
    if NT == 3:
        for f in range(6, 16):
            g = 3 * (f - 6)
            G.d(g, wread4(f, f, 0)); G.d(g + 1, wread4(f, f, 1))
        free = list(range(2, 30, 3)) + [31, 33, 30, 32]
    else:
        for f in range(7, 16): G.d(2 * (f - 7), wread4(f, f, 0), wread4(f, f, 1))
        free = list(range(1, 22, 2)) + [18, 20, 31]
    G.s(sy, *pre_bar, wait_tag(cert, lgkm=0), barrier(), *post_bar); G.noslot.add(sy)
    G.v(sy - 1, valu("v_add_u32", K.vW, t_unit(32 + u + 1), K.vVb))
    g = sy + 1
    nxt = nxt or list(range(NPRE(NT)))
    for i, f in enumerate(nxt):
        if NT == 3: G.d(g, wread4(i, f, 0)); G.d(g + 1, wread4(i, f, 1)); g += 2
        else: G.d(g, wread4(i, f, 0), wread4(i, f, 1)); g += 1
    place_vm(G, vm, sorted(free[:len(vm)]))
    return G.build()

def oproj_final(u0, NT, cfg, lbl, ST):
    seq = [(u, f) for u in range(u0, 32) for f in range(16) if (f & 7) >= 4] + [(u, f) for u in range(u0, 32) for f in range(16) if (f & 7) < 4]
    G = Gaps([mfma(K.acc4(f & 7, qt, NT), K.wf4(i), K.ob(u, f >> 3, qt), K.acc4(f & 7, qt, NT)) for i, (u, f) in enumerate(seq) for qt in range(NT)])
    n = len(G); np_ = NPRE(NT)
    cur = u0
    for i in range(np_, len(seq)):
        u, f = seq[i]
        g = NT * (i - np_)
        if u != cur:
            G.v(g - 1, valu("v_add_u32", K.vW, t_unit(32 + u), K.vVb)); cur = u
        if NT == 3: G.d(g, wread4(i, f, 0)); G.d(g + 1, wread4(i, f, 1))
        else: G.d(g, wread4(i, f, 0), wread4(i, f, 1))
    half = n // 2
    st = [bstore(K.acc4(4 + jj, qt, NT), K.vOL[0], K.SRD_XC, K.sXMine if (jj * NT + qt) < 4 else (K.sOff if (jj * NT + qt) < 8 else K.sOff2), ((jj * NT + qt) & 3) * 1024, cfg["x_st_flags"], tag="xst")
          for jj in range(4) for qt in range(NT)]
    G.s(half - 4, salu("s_add_u32", K.sOff, K.sXMine, 4096)); G.s(half - 3, salu("s_add_u32", K.sOff2, K.sXMine, 8192))
    for k_, s_ in enumerate(st):
        g = half + NT * k_ + NT - 1
        G.d(g, s_); G.noslot.add(g)
    gs = n - cfg.get("xsig_back", 6)
    G.s(gs, *ST("xw", hard=True), wait(vm=0), barrier(), *ST("xs", hard=True)); G.noslot.add(gs)
    if NT == 2:
        G.d(gs, bstore(K.vOne, K.vSig, K.SRD_XC, K.sInPart, 0, "sc1"))
    o = G.build()
    E = o.append
    E(poll_issue(K.SRD_XC, K.sInMine, 0, None))
    E(salu("s_add_u32", K.sOff, K.sXPart, 4096)); E(salu("s_add_u32", K.sOff2, K.sXPart, 8192))
    o += poll_check(f"{lbl}_px", 1)
    o += ST("xp", hard=True)
    rx = lambda jj, qt: V(K.OACC + 4 * (jj * NT + qt), 4)
    for jj in range(4):
        for qt in range(NT):
            k_ = jj * NT + qt
            E(bload(rx(jj, qt), K.vOL[0], K.SRD_XC, K.sXPart if k_ < 4 else (K.sOff if k_ < 8 else K.sOff2), (k_ & 3) * 1024, "sc1"))
    for p in range(2):
        for jj in (2 * p, 2 * p + 1):
            for qt in range(NT):
                a = K.acc4(jj, qt, NT); r = rx(jj, qt)
                E(valu("v_pk_add_f32", a[0:2], a[0:2], r[0:2])); E(valu("v_pk_add_f32", a[2:4], a[2:4], r[2:4]))
        outs = []
        for qt in range(NT):
            t0, t1 = K.acc4(2 * p, qt, NT), K.acc4(2 * p + 1, qt, NT)
            d = V(K.OACC + 48 + 4 * (p * NT + qt), 4); outs.append(d)
            E(valu("v_cvt_pk_bf16_f32", d[0], t0[0], t0[1])); E(valu("v_cvt_pk_bf16_f32", d[1], t0[2], t0[3]))
            E(valu("v_cvt_pk_bf16_f32", d[2], t1[0], t1[1])); E(valu("v_cvt_pk_bf16_f32", d[3], t1[2], t1[3]))
        for d in outs: E(permlane("v_permlane32_swap_b32", d[0], d[2])); E(permlane("v_permlane32_swap_b32", d[1], d[3]))
        for d in outs: E(permlane("v_permlane16_swap_b32", d[0], d[2])); E(permlane("v_permlane16_swap_b32", d[1], d[3]))
        for qt, d in enumerate(outs):
            E(salu("s_mov_b32", K.sT, qt * 65536))
            E(bstore(d, K.vOut, K.SRD_OUT, K.sT, p * 64, cfg["out_flags"]))
    return o

def wave_main(NT, cfg, lbl, late_setup):
    light = NT == 2
    ST = Stamper(cfg)
    prog = []; cold = []
    prog += ST.start() + ST("start")
    E = prog.append
    def issue(ops):
        for pre, d in ops: prog.extend(pre); E(d)
    issue(wq_ops(0, cfg)); issue(x_ops(0, NT, cfg)); issue(wq_ops(1, cfg)); issue(x_ops(1, NT, cfg)); issue(wq_ops(2, cfg)); issue(wq_ops(3, cfg))
    prog += late_setup(light)
    E(valu("v_add_u32", K.vW, wq_unit(0), K.vWb))
    E(wait_tag([("wq", 0), ("x", 0)]))
    E(barrier())
    prog += ST("first", hard=True)
    for f in range(2):
        for h in range(2): E(wread(f, h))
    prog += x_reads(0, NT)
    for f in range(2, NPRE(NT)):
        for h in range(2): E(wread(f, h))
    slots = [f"q{j}" for j in range(32)] + ["X"] + [f"a{i}" for i in range(32)]
    ex = {k_: [] for k_ in slots}; dm = {k_: [] for k_ in slots}
    first = k0_ops(cfg) + [kv_piece(0, p, cfg) for p in range(4)] + [kv_piece(t, p, cfg, slot=t - 1) for t in range(1, 9) for p in range(4)]
    s0, s1 = cfg.get("pf_start", 2), cfg.get("pf_end", 27)
    for k_, x in enumerate(first): ex[f"q{s0 + k_ * (s1 - s0) // len(first)}"].append(x)
    d1 = {"q28": [4], "q29": [5], "q30": [6, 1, 2], "q31": [7, 3], "X": [8]}
    freed = []
    for k_, ts in d1.items():
        for t in ts: dm[k_] += dump_ops(t, t - 1); freed.append((slots.index(k_), t - 1))
    dur = lambda k_: 768 if k_[0] == "q" else (1700 if k_ == "X" else (1800 if k_ == "a15" else 850))
    sl2 = slots[slots.index(cfg.get("kv_from", "q29")):slots.index(cfg.get("kv_to", "a27")) + 1]
    pieces = [(t, p) for t in range(9, 32) for p in range(4) if not (t == 31 and p < 2)]
    rate = len(pieces) / sum(dur(k_) for k_ in sl2)
    credit = 0.0; how = {}; log = []
    for k_ in slots[slots.index(sl2[0]):]:
        si = slots.index(k_)
        credit += rate * dur(k_)
        it = int(k_[1:]) if k_[0] == "a" else -1
        while pieces and credit >= 0.5:
            t, p = pieces[0]
            if t not in how:
                if it > t - 9: how[t] = None
                else:
                    fr = [f for f in freed if f[0] < si]
                    if not fr: break
                    freed.remove(fr[0]); how[t] = fr[0][1]
            pieces.pop(0); credit -= 1
            ex[k_].append(kv_piece(t, p, cfg, slot=how[t]))
            if p == 3:
                log.append((t, k_, how[t]))
                assert it <= t - 3, (t, k_)
                if how[t] is not None:
                    di = max(t - 8, it + cfg.get("dump_lag", 3)); assert di <= t - 2
                    dm[f"a{di}"] += dump_ops(t, how[t]); freed.append((slots.index(f"a{di}"), how[t]))
    assert not pieces
    if cfg.get("verbose") and not light: print("kv schedule:", log)
    other = "fh" if light else "fl"
    def ct(k_):
        return code_touch([f"fh_{k_}", f"fl_{k_}"]) if light and cfg.get("warm_code") else []
    for j in range(32):
        E(mark(f"{lbl}_q{j}"))
        if j % 4 == 1: ex[f"q{j}"] += ct(f"q{j}")
        prog += qproj_step(j, NT, cfg, extra_vm=ex[f"q{j}"], dumps=dm[f"q{j}"], post_bar=ST(f"q{j}") if j % 4 == 3 else [])
    prog += dm["X"]
    E(valu("v_add_u32", K.vK, K0_OFF, K.vKb))
    for kt in range(2):
        for s in range(4): E(kread(kt, s))
    E(salu("s_mov_b32", K.sScale[0], f32bits(QSCALE))); E(salu("s_mov_b32", K.sScale[1], f32bits(QSCALE)))
    def qconv(p):
        o = []
        a = V(K.ACC + 8 * p, 8)
        for r in range(0, 8, 2): o.append(valu("v_pk_mul_f32", a[r:r + 2], a[r:r + 2], K.sScale))
        if p < 4 * NT:
            d = V(K.Q + 4 * p, 4)
            for r in range(4): o.append(valu("v_cvt_pk_bf16_f32", d[r], a[2 * r], a[2 * r + 1]))
        else:
            for r in range(4): o.append(valu("v_cvt_pk_bf16_f32", a[r], a[2 * r], a[2 * r + 1]))
            for r in range(4): o.append(accwr(A(K.Q1 + 4 * (p - 4 * NT) + r), a[r]))
        return o
    for p in range(8 * NT): prog += qconv(p)
    G = Gaps(qk_mfmas(0, NT, False, K.q0))
    place_vm(G, ex["X"], list(range(1, len(G), 2)))
    prog += G.build()
    E(valu("v_add_u32", K.vK, t_unit(0), K.vKb)); E(valu("v_add_u32", K.vV, t_unit(0), K.vVb))
    prog += [kread(0, s) for s in range(4)]
    na, nb = newhead_ops(0, NT)
    prog += na + nb
    SIG0, POLL0 = cfg.get("sig0", 23), cfg.get("poll0", 27)
    nob = cfg.get("o_pre", 5)
    opre = [x for u in range(nob) for x in o_ops(u, NT, cfg)]
    st = []
    for i in range(31):
        E(mark(f"{lbl}_a{i}"))
        vm = ex[f"a{i}"] + [([], d) for d in dm[f"a{i}"]]
        if i >= 24: vm = vm + wo_ops(i - 24, cfg)
        if i > POLL0:
            k_ = NT * cfg.get("opre_rate", 1); vm = vm + opre[:k_]; opre = opre[k_:]
        if st:
            k_ = cfg.get("st_rate", 2); vm = vm + st[:k_]; st = st[k_:]
        if i % 3 == 0: vm = vm + ct(f"a{i}")
        if light: vm = vm + [wo_touch(m) for m, at in enumerate(cfg.get("wt_at", [8, 10, 12, 14, 17, 19, 21, 23])) if at == i]
        pre_bar = []; post_bar = []; cert = []
        if i == SIG0:
            assert not st
            cert = [("ost", 0)]
            if light: post_bar = [signal(0)]
        if light and i == POLL0 - 1: post_bar = [poll_issue(K.SRD_DB, K.sGrp, 0, "poll")]
        if light and i == POLL0:
            pre_bar = poll_check(f"{lbl}_p0", 16); cold.append(poll_spin(f"{lbl}_p0", K.SRD_DB, K.sGrp, 0, 16))
        if i % 2 == 0: post_bar = post_bar + ST(f"a{i}")
        prog += attn_iter(i, NT, cfg, K.q1 if i >= 15 else K.q0, first=i in (0, 16), newhead=i == 15, vm=vm, cert=cert, pre_bar=pre_bar, post_bar=post_bar)
        if i == 15:
            ep, st = epilogue(NT, cfg, lbl, 0)
            prog += ep
            cold.append(slow_path(NT, cfg, lbl, 0))
    for dt in range(8):
        for h in range(2): E(vread(dt, h))
    prog += cvts(1, NT)
    pv = pv_mfmas(1, NT, False)
    G = Gaps(pv[8 * NT:] + pv[:8 * NT])
    n = len(G)
    sy = n - 2 * NPRE(NT) - 1 if NT == 3 else n - NPRE(NT) - 1
    vm = wo_ops(7, cfg) + opre
    per = -(-len(vm) // (sy - 1))
    for k_, (pre, d) in enumerate(vm):
        g = 1 + k_ * (sy - 2) // len(vm)
        G.d(g, *pre, d); G.noslot.add(g)
    G.v(sy - 1, valu("v_add_u32", K.vW, t_unit(32), K.vVb))
    G.s(sy, wait_tag([("t", 32)], lgkm=0), barrier(), *ST("a31")); G.noslot.add(sy)
    g = sy + 1
    for f in range(NPRE(NT)):
        if NT == 3: G.d(g, wread4(f, f, 0)); G.d(g + 1, wread4(f, f, 1)); g += 2
        else: G.d(g, wread4(f, f, 0), wread4(f, f, 1)); g += 1
    prog += G.build()
    ep, st = epilogue(NT, cfg, lbl, 1)
    prog += ep
    cold.append(slow_path(NT, cfg, lbl, 1))
    L = cfg.get("o_look", 6); UF = cfg.get("u_final", 28); SIG1 = cfg.get("sig1", 5)
    POLL1 = cfg.get("poll1", 10)
    nxt_o = nob
    for u in range(UF):
        vm = wo_ops(u + 8, cfg) if u + 8 < 32 else []
        cnt = 0
        while nxt_o <= min(31, u + L) and cnt < (1 if u + 8 < 32 else 1):
            vm = vm + o_ops(nxt_o, NT, cfg); nxt_o += 1; cnt += 1
        E(mark(f"{lbl}_u{u}"))
        if st:
            k_ = min(NT, cfg.get("st1_rate", 3)); vm = st[:k_] + vm; st = st[k_:]
        if u % 4 == 1 or u == UF - 1: vm = vm + ct(f"u{u}")
        if u == cfg.get("tlb_at", 20) and light:
            for so in (K.sXMine, K.sXPart):
                d = bload(K.vDum, K.vSig, K.SRD_XC, K.sOff2, 0, "sc1"); d.defs = []
                vm = vm + [([salu("s_add_u32", K.sOff2, so, 8192)], d)]
        if u == cfg.get("tlb_at", 20) + 1:
            d = bload(K.vPoll, K.vOut, K.SRD_OUT, 0, 0, "nt"); d.defs = []
            vm = vm + [([], d)]
        if cfg.get("no_wo4"): vm = [x for x in vm if x[1].kind != "dma"]
        if cfg.get("no_o4"): vm = [x for x in vm if x[1].kind != "vload"]
        cert = [("t", 32 + u + 1)] if u < UF - 1 else [("t", 63)]
        pre_bar = []; post_bar = []
        if u == SIG1:
            cert = cert + [("ost", 1)]
            if light: post_bar = [signal(128)]
        if light and u == POLL1 - 1: post_bar = [poll_issue(K.SRD_DB, K.sGrp, 128, "poll")]
        if light and u == POLL1:
            pre_bar = poll_check(f"{lbl}_p1", 16); cold.append(poll_spin(f"{lbl}_p1", K.SRD_DB, K.sGrp, 128, 16))
        nx = None
        if u == UF - 1: nx = [f for f in range(16) if (f & 7) >= 4][:NPRE(NT)]
        assert nxt_o <= 16 or u > POLL1
        if u % 2 == 0 or u == UF - 1: post_bar = post_bar + ST(f"u{u}")
        prog += oproj_unit(u, NT, cfg, vm, cert, pre_bar, post_bar, nx)
    assert nxt_o == 32, nxt_o
    prog += oproj_final(UF, NT, cfg, lbl, ST)
    cold.append(poll_spin(f"{lbl}_px", K.SRD_XC, K.sInMine, 0, 1))
    prog += ST.dump(K.sWave)
    if ST.on: prog.append(comment("stnames " + " ".join(ST.names)))
    E(raw("s_endpgm", "branch"))
    return prog, cold

def gen(cfg, warn=None):
    pro = []
    E = pro.append
    E(label("f_start"))
    E(scmp("s_cmp_lt_u32", S(2), 256))
    E(branch("s_cbranch_scc1", "f_go"))
    E(raw("s_endpgm", "branch"))
    E(label("f_go"))
    E(sload(S(72, 16), S(0, 2), 0)); E(sload(S(88, 8), S(0, 2), 64)); E(sload(S(96, 2), S(0, 2), 96))
    E(valu("v_and_b32", K.vLane, 63, V(0)))
    E(valu("v_lshrrev_b32", K.t0, 6, V(0)))
    E(readfirstlane(K.sWave, K.t0))
    sBlk, sB, sHp, sKh, sNt = S(47), S(48), S(49), S(50), S(51)
    E(salu("s_bfe_u32", sBlk, S(2), (1 << 16) | 2))
    E(salu("s_lshr_b32", sB, S(2), 5))
    E(salu("s_bfe_u32", K.sT, S(2), (2 << 16) | 3))
    E(salu("s_and_b32", sHp, S(2), 3)); E(salu("s_lshl_b32", sHp, sHp, 2)); E(salu("s_add_u32", sHp, sHp, K.sT))
    E(salu("s_bfe_u32", sKh, S(2), (1 << 16) | 1))
    E(salu("s_and_b32", sNt, S(2), 1)); E(salu("s_lshl_b32", sNt, sNt, 2)); E(salu("s_add_u32", sNt, sNt, K.sT))
    l, t0, t1, t2, t3 = K.vLane, K.t0, K.t1, K.t2, K.t3
    E(valu("v_and_b32", t0, 15, l)); E(valu("v_lshrrev_b32", t1, 4, l))
    E(salu("s_and_b32", K.sT, K.sWave, 1)); E(salu("s_lshl_b32", K.sT, K.sT, 1))
    E(salu("s_lshr_b32", K.sT2, K.sWave, 1)); E(salu("s_lshl_b32", K.sT2, K.sT2, 3))
    E(salu("s_add_u32", K.sT, K.sT, K.sT2)); E(salu("s_lshl_b32", K.sT, K.sT, 13))
    E(valu("v_lshrrev_b32", t2, 5, l)); E(valu("v_lshlrev_b32", t2, 15, t2))
    E(valu("v_and_b32", t3, 31, l)); E(valu("v_lshl_add_u32", t2, t3, 4, t2))
    E(valu("v_add_u32", K.vDWQ[0], K.sT, t2))
    E(valu("v_add_u32", K.vDWQ[1], 16 * 8192, K.vDWQ[0]))
    E(valu("v_add_u32", K.vDWQ[2], 8192, K.vDWQ[0]))
    E(valu("v_add_u32", K.vDWQ[3], 17 * 8192, K.vDWQ[0]))
    E(salu("s_mul_i32", K.sWqM0, K.sWave, 4096 + 64))
    E(salu("s_mul_i32", K.sT, K.sWave, 48 * 2048))
    E(valu("v_lshrrev_b32", t2, 3, l)); E(valu("v_lshlrev_b32", t2, 11, t2)); E(valu("v_add_u32", t2, K.sT, t2))
    E(valu("v_and_b32", t3, 7, l)); E(valu("v_xor_b32", t3, t1, t3))
    E(valu("v_lshl_add_u32", K.vXD[0], t3, 4, t2))
    E(valu("v_xor_b32", K.vXD[1], 64, K.vXD[0])); E(valu("v_add_u32", K.vXD[1], 8 * 2048, K.vXD[1]))
    for qt in range(1, 3):
        for hh in range(2): E(valu("v_add_u32", K.vXD[2 * qt + hh], qt * 32768, K.vXD[hh]))
    E(salu("s_mul_i32", K.sXM0, K.sWave, 12288)); E(salu("s_add_u32", K.sXM0, K.sXM0, XR))
    E(wait(lgkm=0))
    E(scmp("s_cmp_eq_u32", sBlk, 0))
    E(salu("s_cselect_b64", S(4, 2), S(72, 2), S(82, 2)))
    E(salu("s_cselect_b64", S(8, 2), S(78, 2), S(88, 2)))
    E(salu("s_cselect_b64", S(12, 2), S(74, 2), S(84, 2)))
    E(salu("s_cselect_b64", S(16, 2), S(76, 2), S(86, 2)))
    E(salu("s_cselect_b64", S(24, 2), S(80, 2), S(90, 2)))
    E(salu("s_lshl_b32", K.sT, sHp, 9))
    E(salu("s_add_u32", S(8), S(8), K.sT)); E(salu("s_addc_u32", S(9), S(9), 0))
    E(salu("s_sub_u32", S(10), 1024 * 8192, K.sT)); E(salu("s_mov_b32", S(11), 0x00020000))
    E(salu("s_mul_i32", K.sT, sB, 360448))
    E(salu("s_add_u32", S(4), S(4), K.sT)); E(salu("s_addc_u32", S(5), S(5), 0))
    E(salu("s_mov_b32", S(6), 360448)); E(salu("s_mov_b32", S(7), 0x00020000))
    E(scmp("s_cmp_eq_u32", K.sWave, 3))
    E(branch("s_cbranch_scc0", "f_heavy"))

    def late_setup(light):
        o = []
        E = o.append
        if light:
            E(raw("s_getpc_b64 s[98:99]", "salu", ["s98", "s99"]))
            E(raw("f_pc:", "label"))
            E(raw("s_sub_u32 s98, s98, f_pc-f_start", "salu", ["s98", "scc"], ["s98"])); E(raw("s_subb_u32 s99, s99, 0", "salu", ["s99", "scc"], ["s99", "scc"]))
            E(valu("v_min_u32", K.vPg, cfg.get("ct_pages", 2) - 1, t1)); E(valu("v_lshlrev_b32", K.vPg, 12, K.vPg))
            E(valu("v_min_u32", t2, cfg.get("ct_lines", 16) - 1, t0)); E(valu("v_lshl_add_u32", K.vPg, t2, 7, K.vPg))
            E(valu("v_lshrrev_b32", t2, 5, l)); E(valu("v_lshlrev_b32", K.vWT, 19, t2))
            E(valu("v_bfe_u32", t2, l, 4, 1)); E(valu("v_lshl_add_u32", K.vWT, t2, 17, K.vWT))
            E(valu("v_bfe_u32", t2, l, 1, 3)); E(valu("v_lshl_add_u32", K.vWT, t2, 11, K.vWT))
            E(valu("v_and_b32", t2, 1, l)); E(valu("v_lshl_add_u32", K.vWT, t2, 7, K.vWT))
            E(salu("s_lshl_b32", K.sT, sB, 14)); E(valu("v_add_u32", K.vWT, K.sT, K.vWT))
        E(valu("v_lshrrev_b32", t2, 1, t0)); E(valu("v_xor_b32", t2, t1, t2))
        E(valu("v_lshlrev_b32", t3, 7, t0)); E(valu("v_lshl_add_u32", t3, t2, 4, t3))
        E(valu("v_add_u32", K.vXRd[0], K.sXM0, t3))
        E(valu("v_xor_b32", t3, 64, t3)); E(valu("v_add_u32", K.vXRd[1], K.sXM0, t3))
        E(valu("v_lshrrev_b32", t2, 2, l)); E(valu("v_and_b32", t2, 7, t2))
        E(valu("v_lshlrev_b32", K.vWb, 11, t2))
        E(valu("v_lshrrev_b32", t3, 1, t2)); E(valu("v_lshl_add_u32", K.vWb, t3, 6, K.vWb))
        E(valu("v_and_b32", t3, 1, t2)); E(valu("v_lshl_add_u32", K.vWb, t3, 3, K.vWb))
        E(valu("v_lshrrev_b32", t3, 5, l)); E(valu("v_lshl_add_u32", K.vWb, t3, 10, K.vWb))
        E(valu("v_mul_u32_u24", K.vVb, 1056, t2)); E(valu("v_lshl_add_u32", K.vVb, t3, 8, K.vVb))
        E(valu("v_and_b32", t3, 3, l))
        E(valu("v_lshl_add_u32", K.vWb, t3, 4, K.vWb)); E(valu("v_lshl_add_u32", K.vVb, t3, 3, K.vVb))
        E(valu("v_and_b32", t2, 7, l)); E(valu("v_mul_u32_u24", K.vKb, 1056, t2))
        E(valu("v_lshrrev_b32", t2, 3, t0)); E(valu("v_lshl_add_u32", K.vKb, t2, 8, K.vKb))
        E(valu("v_lshl_add_u32", K.vKb, t1, 4, K.vKb))
        E(valu("v_lshlrev_b32", K.vDK, 11, t1)); E(valu("v_lshl_add_u32", K.vDK, t0, 4, K.vDK))
        E(valu("v_lshlrev_b32", K.vOL[0], 4, l))
        E(valu("v_add_u32", K.vOL[1], 131072, K.vOL[0])); E(valu("v_add_u32", K.vOL[2], 262144, K.vOL[0]))
        E(salu("s_lshl_b32", K.sT, K.sWave, 9)); E(valu("v_add_u32", K.vDK, K.sT, K.vDK))
        E(salu("s_mul_i32", K.sWvK, K.sWave, 2112))
        E(valu("v_add_u32", K.vDump[0], K.sWvK, K.vOL[0]))
        E(valu("v_add_u32", K.vDump[1], 57344, K.vDump[0])); E(valu("v_add_u32", K.vDump[2], 2 * 57344, K.vDump[0]))
        E(salu("s_lshl_b32", K.sT, sKh, 7))
        E(valu("v_lshlrev_b32", t2, 4, t0)); E(valu("v_xor_b32", t2, K.sT, t2))
        E(valu("v_lshl_add_u32", t2, t1, 14, t2))
        E(salu("s_lshl_b32", K.sT, K.sWave, 12))
        E(valu("v_add_u32", K.vWO[0], K.sT, t2)); E(valu("v_add_u32", K.vWO[1], 2048, K.vWO[0]))
        E(salu("s_mul_i32", K.sT, K.sWave, 48 * 4096))
        E(valu("v_lshlrev_b32", K.vOut, 12, t0)); E(valu("v_lshl_add_u32", K.vOut, t1, 4, K.vOut)); E(valu("v_add_u32", K.vOut, K.sT, K.vOut))
        for r in range(4): E(valu("v_mov_b32", K.ONES[r], 0x3f803f80))
        E(valu("v_lshlrev_b32", K.vSig, 25, l))
        E(valu("v_mov_b32", K.vOne, 1)); E(valu("v_mov_b32", K.vPoll, 0))
        E(salu("s_lshl_b32", K.sT, sB, 4)); E(salu("s_add_u32", K.sT, K.sT, sHp)); E(salu("s_lshl_b32", K.sT, K.sT, 18))
        E(salu("s_add_u32", S(12), S(12), K.sT)); E(salu("s_addc_u32", S(13), S(13), 0))
        E(salu("s_mov_b32", S(14), 262144)); E(salu("s_mov_b32", S(15), 0x00020000))
        E(salu("s_add_u32", S(16), S(16), K.sT)); E(salu("s_addc_u32", S(17), S(17), 0))
        E(salu("s_mov_b32", S(18), 262144)); E(salu("s_mov_b32", S(19), 0x00020000))
        E(salu("s_mul_i32", K.sT, sBlk, 88)); E(salu("s_mul_i32", K.sT2, sB, 11)); E(salu("s_add_u32", K.sT, K.sT, K.sT2)); E(salu("s_lshl_b32", K.sT, K.sT, 17))
        E(salu("s_add_u32", S(20), S(96), K.sT)); E(salu("s_addc_u32", S(21), S(97), 0))
        E(salu("s_mov_b32", S(22), 11 * 131072)); E(salu("s_mov_b32", S(23), 0x00020000))
        E(salu("s_mul_i32", K.sOLd, K.sWave, 3 * 131072))
        E(salu("s_lshl_b32", K.sT, sHp, 13)); E(salu("s_add_u32", K.sOSt, K.sOLd, K.sT))
        E(salu("s_lshl_b32", K.sT, sKh, 16)); E(salu("s_add_u32", K.sOLd, K.sOLd, K.sT))
        E(salu("s_lshl_b32", K.sT, sKh, 22)); E(salu("s_lshl_b32", K.sT2, sNt, 8)); E(salu("s_add_u32", K.sT, K.sT, K.sT2))
        E(salu("s_add_u32", S(24), S(24), K.sT)); E(salu("s_addc_u32", S(25), S(25), 0))
        E(salu("s_sub_u32", S(26), 4096 * 2048, K.sT)); E(salu("s_mov_b32", S(27), 0x00020000))
        E(salu("s_mul_i32", K.sT, sB, 176 * 4096)); E(salu("s_add_u32", K.sT, K.sT, K.sT2))
        E(salu("s_lshl_b32", K.sT2, sBlk, 11)); E(salu("s_add_u32", K.sT, K.sT, K.sT2))
        E(salu("s_lshl_b32", K.sT2, sKh, 7)); E(salu("s_add_u32", K.sT, K.sT, K.sT2))
        E(salu("s_add_u32", S(28), S(92), K.sT)); E(salu("s_addc_u32", S(29), S(93), 0))
        E(salu("s_mov_b32", S(30), 175 * 4096 + 128)); E(salu("s_mov_b32", S(31), 0x00020000))
        E(salu("s_add_u32", S(32), S(96), WS_XCH)); E(salu("s_addc_u32", S(33), S(97), 0))
        E(salu("s_mov_b32", S(34), WS_INB + 256 * 128)); E(salu("s_mov_b32", S(35), 0x00020000))
        E(salu("s_mul_i32", K.sT, K.sWave, 12288))
        E(salu("s_mul_i32", K.sXMine, S(2), 49152)); E(salu("s_add_u32", K.sXMine, K.sXMine, K.sT))
        E(salu("s_xor_b32", K.sT2, S(2), 2))
        E(salu("s_mul_i32", K.sXPart, K.sT2, 49152)); E(salu("s_add_u32", K.sXPart, K.sXPart, K.sT))
        E(salu("s_lshl_b32", K.sInMine, S(2), 7)); E(salu("s_add_u32", K.sInMine, K.sInMine, WS_INB))
        E(salu("s_lshl_b32", K.sInPart, K.sT2, 7)); E(salu("s_add_u32", K.sInPart, K.sInPart, WS_INB))
        E(salu("s_mov_b32", S(36), S(94))); E(salu("s_mov_b32", S(37), S(95)))
        E(salu("s_mov_b32", S(38), 256)); E(salu("s_mov_b32", S(39), 0x00020000))
        E(salu("s_lshl_b32", K.sGrp, sB, 1)); E(salu("s_add_u32", K.sGrp, K.sGrp, sBlk)); E(salu("s_lshl_b32", K.sGrp, K.sGrp, 3))
        E(bstore(K.vPoll, K.vSig, K.SRD_XC, K.sInMine, 0, "sc1"))
        return o
    b, cb = wave_main(2, cfg, "fl", late_setup)
    a, ca = wave_main(3, cfg, "fh", late_setup)
    a = [label("f_heavy")] + a
    for _ in range(2):
        for p in [pro + a, pro + b] + ca + cb:
            tr = flatten_trace(p); insert_waits(tr); check_hazards(tr, warn=warn)
    L = emit(flatten_static(pro + b))
    for c in cb: L += emit(flatten_static(c))
    L += emit(flatten_static(a))
    for c in ca: L += emit(flatten_static(c))
    L += ["f_end:", "    s_endpgm", ".fill 4096, 4, 0xbf810000"]
    return L
```

```python
from asmlib import *
import math, struct

KNAME1 = "qattn_kernel"
HU = 8448
U = 2 * HU
NU = 9
K0_OFF = NU * U
NWQ = 5
QSCALE = math.log2(math.e) / math.sqrt(128.0)
def f32bits(x): return struct.unpack("<I", struct.pack("<f", x))[0]
LMAX = 2.0 ** 16

def wq_unit(j): return (4 + (j + 3) % 5) * U
def wq_cls(f): return f * 2048 + (f >> 1) * 64 + (f & 1) * 8

class K:
    SRD_X = S(4, 4); SRD_WQ = S(8, 4); SRD_K = S(12, 4); SRD_V = S(16, 4); SRD_O = S(20, 4)
    sWave = S(24); sT = S(25); sT2 = S(26); sCnt = S(27); sWqOff = S(28); sXOff = S(29)
    sWqM0 = S(30)
    sRd = S(31); sWr = S(32); sKOff = S(33); sVOff = S(34); sHead = S(35); sScale = S(36, 2); sOOff = S(38); sWqRd = S(39); sWqWr = S(40)
    sKVm = S(41); sWrV = S(42); sWvK = S(43); sWvV = S(3)
    vLane = V(1); t0 = V(2); t1 = V(3); t2 = V(4); t3 = V(5)
    vDWQ = V(6, 4)
    vX = V(10, 3)
    vWb = V(13); vW = V(14)
    vKb = V(15); vK = V(16); vVb = V(17); vV = V(18)
    vDKV = V(19)
    vO = V(20); vDK = V(31); vDV = V(23)
    ONES = V(24, 4)
    RINV = V(28, 3); TM = V(32, 8)
    MREF = 40; LACC = 52
    ACC = 64
    Q = 64
    SP = 112
    OACC = 160
    XB = 0
    WF = 96
    Q1 = 128
    KF = 0
    VF = 32
    @staticmethod
    def acc(dt, qt, NT):
        return V(K.ACC + 8 * ((dt >> 1) * NT + qt) + 4 * (dt & 1), 4)
    @staticmethod
    def xb(buf, qt): return A(K.XB + 12 * buf + 4 * qt, 4)
    @staticmethod
    def wf(f): return A(K.WF + 4 * (f & 7), 4)
    @staticmethod
    def q(s, qt, NT): return V(K.Q + 4 * (s * NT + qt), 4)
    @staticmethod
    def sp(par, qt): return V(K.SP + 24 * par + 8 * qt, 8)
    @staticmethod
    def mref(qt): return V(K.MREF + 4 * qt, 4)
    @staticmethod
    def lacc(qt): return V(K.LACC + 4 * qt, 4)
    @staticmethod
    def oacc(dt, qt, NT): return V(K.OACC + 8 * ((dt >> 1) * NT + qt) + 4 * (dt & 1), 4)
    @staticmethod
    def kf(kt, s): return A(K.KF + 16 * kt + 4 * s, 4)
    @staticmethod
    def vf(dt): return A(K.VF + 4 * dt, 4)

def wread(f, h):
    d = K.wf(f)
    off = h * 512 + (f >> 3) * 256 + ((f >> 1) & 3) * 64 + (f & 1) * 8
    return ds_read(d[2 * h:2 * h + 2], K.vW, off, tr=True)

def wq_pieces(unit_reg_or_off, cfg, tag):
    ops = []
    for p in range(4):
        i, e2 = p >> 1, p & 1
        lit = i * 2056 + e2 * 1024
        if isinstance(unit_reg_or_off, int):
            pre = salu("s_add_u32", "m0", K.sWqM0, unit_reg_or_off + lit)
        else:
            pre = salu("s_add_u32", "m0", unit_reg_or_off, lit)
        ops.append((pre, dma(K.vDWQ[p], K.SRD_WQ, K.sWqOff, 0, cfg["wq_flags"], tag=tag)))
    return ops

def kv_pieces(is_v, lds_off, chunk, ns, cfg, tag, lds_reg=None, soff_reg=None):
    ops = []
    srd_ = K.SRD_V if is_v else K.SRD_K
    for n in ns:
        if lds_reg is None: pre = [salu("s_mov_b32", "m0", lds_off + n * 800)]
        else: pre = [salu("s_add_u32", "m0", lds_reg, lds_off + n * 800)]
        so = soff_reg
        if so is None:
            so = K.sKVm
            if n == ns[0]: pre = [salu("s_mov_b32", K.sKVm, chunk * 8192)] + pre
        ops.append((pre, dma(K.vDKV, srd_, so, n * 256, cfg["kv_flags"], tag=tag)))
    return ops

def NPRE(NT): return 6 if NT == 3 else 7

def qproj_step(j, NT, cfg, dyn, extra_vm=(), load_wq=True, load_x=True, last=False, loopend=None):
    xb = j & 7
    G = Gaps([mfma(K.acc(f, qt, NT), K.wf(f), K.xb(xb, qt), K.acc(f, qt, NT)) for f in range(16) for qt in range(NT)])
    n = len(G)
    sy = 12 * NT - 1
    if NT == 3:
        for f in range(6, 16):
            g = 3 * (f - 6)
            G.d(g, wread(f, 0)); G.d(g + 1, wread(f, 1))
        free = list(range(2, 30, 3)) + [31, 33]
    else:
        for f in range(7, 16):
            g = 2 * (f - 7)
            G.d(g, wread(f, 0), wread(f, 1))
        free = list(range(1, 22, 2)) + [18, 20, 31]
    if not last:
        G.s(sy, wait_tag([("wq", (j + 1) % 5 if not dyn else ("d", (j + 1) & 7))], lgkm=0), barrier()); G.noslot.add(sy)
        if dyn:
            G.s(sy - 3, salu("s_add_u32", K.sWqWr, K.sWqRd, K.sWqM0), salu("s_add_u32", K.sWqRd, K.sWqRd, U))
            G.s(sy - 1, scmp("s_cmp_ge_u32", K.sWqRd, NU * U), salu("s_cselect_b32", K.sWqRd, 4 * U, K.sWqRd))
            G.v(sy - 1, valu("v_add_u32", K.vW, K.sWqRd, K.vWb))
        else:
            G.v(sy - 1, valu("v_add_u32", K.vW, wq_unit(j + 1), K.vWb))
        g = sy + 1
        for f in range(NPRE(NT)):
            if NT == 3:
                G.d(g, wread(f, 0)); G.d(g + 1, wread(f, 1)); g += 2
            else:
                G.d(g, wread(f, 0), wread(f, 1)); g += 1
    else:
        G.s(sy, wait(lgkm=0), barrier()); G.noslot.add(sy)
    vm = []
    if load_wq:
        G.s(0, salu("s_add_u32", K.sWqOff, K.sWqOff, 32 * 8192))
        if dyn: vm += [([p], d) for p, d in wq_pieces(K.sWqWr, cfg, ("wq", ("d", (j + 4) & 7)))]
        else: vm += [([p], d) for p, d in wq_pieces(wq_unit(j + 4), cfg, ("wq", (j + 4) % 5))]
    if load_x and (j & 1) == 0:
        for qt in range(NT):
            for dj in range(2):
                jj = j + 6 + dj
                vm.append(([], bload(K.xb(jj & 7, qt), K.vX[qt], K.SRD_X, K.sXOff if dyn else 0, jj * 64, cfg["x_flags"])))
    vm += list(extra_vm)
    if cfg.get("no_x"): vm = [x for x in vm if x[1].kind != "vload"]
    if cfg.get("no_wq"): vm = [x for x in vm if not (x[1].tag and x[1].tag[0] == "wq")]
    if cfg.get("no_kv0"): vm = [x for x in vm if x[1].tag != "kv0"]
    assert len(vm) <= len(free), (len(vm), len(free))
    free = sorted(free[:len(vm)])
    for (pre, d), g in zip(vm, free):
        if pre:
            if (g - 1) in G.noslot: G.d(g, *pre)
            else: G.s(g - 1, *pre)
        G.d(g, d); G.noslot.add(g)
    if loopend:
        G.s(n - 3, salu("s_add_u32", K.sXOff, K.sXOff, 512), salu("s_add_u32", K.sCnt, K.sCnt, 1))
        G.s(n - 2, scmp("s_cmp_lt_u32", K.sCnt, 3))
        G.v(n - 1, branch("s_cbranch_scc1", loopend))
    out = G.build()
    if cfg.get("no_qbar"): out = [x for x in out if x.kind != "barrier"]
    if cfg.get("no_wrd"): out = [x for x in out if x.kind != "ds_read"]
    return out

def kread(kt, s): return ds_read(K.kf(kt, s), K.vK, kt * 512 + s * 64)
def vread(dt, h):
    d = K.vf(dt)
    return ds_read(d[2 * h:2 * h + 2], K.vV, HU + h * 512 + dt * 32, tr=True)
def exps(par, kt, NT):
    return [valu("v_exp_f32", K.sp(par, qt)[4 * kt + r], K.sp(par, qt)[4 * kt + r]) for qt in range(NT) for r in range(4)]
def cvts(par, NT):
    o = []
    for qt in range(NT):
        s = K.sp(par, qt)
        o += [valu("v_cvt_pk_bf16_f32", s[3], s[2], s[3]), valu("v_cvt_pk_bf16_f32", s[2], s[0], s[1]),
              valu("v_cvt_pk_bf16_f32", s[4], s[4], s[5]), valu("v_cvt_pk_bf16_f32", s[5], s[6], s[7])]
    return o
def pfrag(par, qt): return K.sp(par, qt)[2:6]
def qk_mfmas(par, NT, cinit):
    o = []
    for kt in range(2):
        for s in range(4):
            for qt in range(NT):
                d = K.sp(par, qt)[4 * kt:4 * kt + 4]
                c = d if s else (K.mref(qt) if cinit else 0)
                o.append(mfma(d, K.kf(kt, s), K.q(s, qt, NT), c))
    return o
def pv_mfmas(par, NT, first):
    o = []
    for dt in range(8):
        for qt in range(NT):
            d = K.oacc(dt, qt, NT)
            o.append(mfma(d, K.vf(dt), pfrag(par, qt), 0 if first else d))
    for qt in range(NT):
        o.append(mfma(K.lacc(qt), K.ONES, pfrag(par, qt), 0 if first else K.lacc(qt)))
    return o

def ring_advance_ops(NT):
    if NT == 3: o = [salu("s_add_u32", K.sWr, K.sRd, K.sWvK), salu("s_add_u32", K.sWrV, K.sRd, K.sWvV)]
    else: o = [salu("s_mov_b32", K.sWr, K.sRd)]
    return o + [salu("s_add_u32", K.sRd, K.sRd, U)], [scmp("s_cmp_ge_u32", K.sRd, NU * U), salu("s_cselect_b32", K.sRd, 0, K.sRd)]
def ring_advance(G, g, NT):
    a_, b_ = ring_advance_ops(NT)
    G.s(g - 1, *a_[:-1]); G.s(g, a_[-1]); G.s(g + 1, *b_)

def tile_ops(cfg, NT):
    f = cfg["kv_flags"]
    if NT == 3:
        return [([salu("s_mov_b32", "m0", K.sWr)], dma(K.vDK, K.SRD_K, K.sKOff, 0, f)),
                ([salu("s_add_u32", "m0", K.sWr, 800)], dma(K.vDK, K.SRD_K, K.sKOff, 256, f)),
                ([salu("s_mov_b32", "m0", K.sWrV)], dma(K.vDV, K.SRD_V, K.sVOff, 0, f))]
    ops = [([salu("s_add_u32", "m0", K.sWr, n * 800)], dma(K.vDKV, K.SRD_K, K.sKOff, n * 256, f)) for n in (6, 7)]
    ops += [([salu("s_add_u32", "m0", K.sWr, HU + n * 800)], dma(K.vDKV, K.SRD_V, K.sVOff, n * 256, f)) for n in range(3, 8)]
    return ops
def tile_next(): return [salu("s_add_u32", K.sKOff, K.sKOff, 8192), salu("s_add_u32", K.sVOff, K.sVOff, 8192)]
def set_wr(unit, NT):
    if NT == 3: return [salu("s_add_u32", K.sWr, K.sWvK, unit * U), salu("s_add_u32", K.sWrV, K.sWvV, unit * U)]
    return [salu("s_mov_b32", K.sWr, unit * U)]
def KV_WAIT(NT): return 21 if NT == 3 else 49

def attn_iter(i_par, NT, cfg, first=False, loopend=None):
    pn = i_par ^ 1
    G = Gaps(qk_mfmas(pn, NT, True) + pv_mfmas(i_par, NT, first))
    n = len(G); nA = 4 * NT; nC = 8 * NT
    dsA = [kread(1, s) for s in range(4)] + [vread(dt, h) for dt in range(4) for h in range(2)]
    cv = cvts(i_par, NT)
    e0 = exps(pn, 0, NT); e1 = exps(pn, 1, NT)
    dsC = [vread(dt, h) for dt in range(4, 8) for h in range(2)]
    ops = tile_ops(cfg, NT)
    upd = [valu("v_add_u32", K.vK, K.sRd, K.vKb), valu("v_add_u32", K.vV, K.sRd, K.vVb)]
    def put_dma(g, k_):
        pre, d = ops[k_]
        G.s(g - 1, *pre); G.mem[g].insert(0, d); G.noslot.add(g)
    if NT == 3:
        for g in range(12): G.d(g, dsA[g]); G.v(g, cv[g])
        for k_, e in enumerate(e0): G.v(nA + k_, e)
        plan = ["dd", "e", "m", "e", "dd", "e", "m", "e", "dd", "e", "m", "e", "dd", "e", "e", "e", "u", "e", "B", "k", "e", "k", "e", "k", "k", "", ""]
        ei = di = mi = ki = 0
        for k_, p in enumerate(plan):
            g = nC + k_
            if p == "dd": G.d(g, dsC[di], dsC[di + 1]); di += 2; G.noslot.add(g)
            elif p == "e": G.v(g, e1[ei]); ei += 1
            elif p == "m": put_dma(g, mi); mi += 1
            elif p == "u": ring_advance(G, g - 2, NT); G.v(g, *upd)
            elif p == "B": G.s(g, wait(lgkm=0, vm=KV_WAIT(NT)), barrier()); G.noslot.add(g)
            elif p == "k": G.d(g, kread(0, ki)); ki += 1
        assert (ei, di, mi, ki) == (12, 8, 3, 4), (ei, di, mi, ki)
        G.s(nC + 11, *tile_next())
    else:
        for g in range(8): G.d(g, dsA[g]); G.v(g, cv[g])
        for k_, g in enumerate(range(8, 12)): G.d(g, dsA[8 + k_])
        for k_, e in enumerate(e0): G.v(nA + k_, e)
        for k_ in range(7): put_dma(1 + 2 * k_, k_)
        G.s(14, *tile_next())
        plan = ["dd", "e", "dd", "e", "dd", "e", "dd", "e", "e", "u", "e", "B", "k", "k", "ke", "ke", "", ""]
        ei = di = ki = 0
        for k_, p in enumerate(plan):
            g = nC + k_
            if p == "dd": G.d(g, dsC[di], dsC[di + 1]); di += 2
            elif p == "u": ring_advance(G, g - 2, NT); G.v(g, *upd)
            elif p == "B": G.s(g, wait(lgkm=0, vm=KV_WAIT(NT)), barrier()); G.noslot.add(g)
            else:
                if "k" in p: G.d(g, kread(0, ki)); ki += 1
                if "e" in p: G.v(g, e1[ei]); ei += 1
        assert (ei, di, ki) == (8, 8, 4), (ei, di, ki)
    if loopend:
        G.s(n - 3, salu("s_add_u32", K.sCnt, K.sCnt, 1))
        G.s(n - 2, scmp("s_cmp_lt_u32", K.sCnt, 7))
        G.v(n - 1, branch("s_cbranch_scc1", loopend))
    out = G.build()
    if cfg.get("no_kv"): out = [x for x in out if x.kind != "dma"]
    if cfg.get("no_abar"): out = [x for x in out if x.kind != "barrier"]
    if cfg.get("no_ards"): out = [x for x in out if x.kind != "ds_read"]
    if cfg.get("no_exp"): out = [x for x in out if x.kind != "trans"]
    return out

def xlane(op, dst, tmp):
    return [valu("v_mov_b32", tmp, dst), permlane("v_permlane32_swap_b32", tmp, dst), valu(op, dst, tmp, dst),
            valu("v_mov_b32", tmp, dst), permlane("v_permlane16_swap_b32", tmp, dst), valu(op, dst, tmp, dst)]

def interleave(lists):
    out = []
    for i in range(max(len(l) for l in lists)):
        for l in lists:
            if i < len(l): out.append(l[i])
    return out

def attn_pre(NT, cfg):
    o = []
    for kt in range(2):
        for s in range(4): o.append(kread(kt, s))
    G = Gaps(qk_mfmas(0, NT, False))
    o += G.build()
    return o

def attn_max(NT):
    per = []
    for qt in range(NT):
        s = K.sp(0, qt); m = K.TM[qt]; t = K.TM[4 + qt]
        l = [valu("v_max3_f32", m, s[0], s[1], s[2]), valu("v_max3_f32", t, s[3], s[4], s[5]),
             valu("v_max3_f32", m, m, s[6], s[7]), valu("v_max_f32", m, t, m)]
        l += xlane("v_max_f32", m, t)
        l += [valu("v_sub_f32", K.mref(qt)[r], 0, m) for r in range(4)]
        l += [valu("v_sub_f32", s[r], s[r], m) for r in range(8)]
        l += [valu("v_exp_f32", s[r], s[r]) for r in range(8)]
        per.append(l)
    return interleave(per)

def attn_tail(NT, cfg, loader, lbl):
    o = []
    E = o.append
    for dt in range(8):
        for h in range(2): E(vread(dt, h))
    o += cvts(1, NT)
    G = Gaps(pv_mfmas(1, NT, False)[8 * NT:] + pv_mfmas(1, NT, False)[:8 * NT])
    for k_, (pre, d) in enumerate(tile_ops(cfg, NT)):
        g = 1 + 2 * k_
        G.s(g - 1, *pre); G.d(g, d); G.noslot.add(g)
    G.s(16, *tile_next())
    o += G.build()
    E(salu("s_mov_b32", K.sT, f32bits(LMAX)))
    E(valu("v_add_f32", K.t1, K.lacc(0)[0], K.lacc(1)[0]))
    if NT == 3: E(valu("v_add_f32", K.t1, K.lacc(2)[0], K.t1))
    E(vcmp("v_cmp_nge_f32", "vcc", K.sT, K.t1))
    E(nop(4))
    if not cfg.get("no_slow"): E(branch("s_cbranch_vccnz", f"{lbl}_slow"))
    E(label(f"{lbl}_norm"))
    for qt in range(NT): E(valu("v_rcp_f32", K.RINV[qt], K.lacc(qt)[0]))
    for qt in range(NT):
        E(salu("s_add_u32", K.sT, K.sOOff, qt * 131072))
        for s in range(4):
            a = V(K.OACC + 8 * (s * NT + qt), 8)
            for r in range(8): E(valu("v_mul_f32", a[r], K.RINV[qt], a[r]))
            for r in range(4): E(valu("v_cvt_pk_bf16_f32", a[r], a[2 * r], a[2 * r + 1]))
            E(bstore(a[0:4], K.vO, K.SRD_O, K.sT, s * 1024, cfg["o_st_flags"]))
    return o

def slow_path(NT, cfg, lbl):
    o = [label(f"{lbl}_slow")]
    E = o.append
    sH = S(48); sC = S(49); sO = S(50)
    vKo = V(21); vVo = V(22);
    E(wait(vm=0, lgkm=0))
    E(salu("s_lshl_b32", sH, K.sHead, 17))
    E(valu("v_and_b32", K.t0, 15, K.vLane)); E(valu("v_lshrrev_b32", K.t1, 4, K.vLane))
    E(valu("v_lshlrev_b32", vKo, 8, K.t0)); E(valu("v_lshl_add_u32", vKo, K.t1, 4, vKo))
    E(valu("v_lshlrev_b32", vVo, 10, K.t1)); E(valu("v_lshl_add_u32", vVo, K.t0, 1, vVo))
    for qt in range(NT): E(valu("v_mov_b32", K.TM[qt], 0xff800000))
    def kload():
        l = []
        for kt in range(2):
            l.append(salu("s_add_u32", sO, sC, kt * 4096))
            for s in range(4): l.append(bload(K.kf(kt, s), vKo, K.SRD_K, sO, s * 64))
        l.append(wait(vm=0))
        return l
    E(salu("s_mov_b32", sC, sH))
    b = [label(f"{lbl}_s1")] + kload() + qk_mfmas(0, NT, False) + [nop(7)]
    for qt in range(NT):
        s = K.sp(0, qt); m = K.TM[qt]
        for r in range(0, 8, 2): b.append(valu("v_max3_f32", m, m, s[r], s[r + 1]))
    b += [salu("s_add_u32", sC, sC, 8192), salu("s_and_b32", sO, sC, 0x1ffff), scmp("s_cmp_lg_u32", sO, 0), branch("s_cbranch_scc1", f"{lbl}_s1")]
    o.append(Loop(b, reps=2))
    for qt in range(NT):
        o += xlane("v_max_f32", K.TM[qt], K.TM[4 + qt])
        for r in range(4): E(valu("v_sub_f32", K.mref(qt)[r], 0, K.TM[qt]))
        for r in range(4): E(valu("v_mov_b32", K.lacc(qt)[r], 0))
    for r in range(32 * NT): E(valu("v_mov_b32", V(K.OACC + r), 0))
    E(salu("s_mov_b32", sC, sH))
    b = [label(f"{lbl}_s2")] + kload()
    vt = K.sp(1, 0); fr = K.sp(1, 1)[0:4]
    b += qk_mfmas(0, NT, True) + [nop(7)] + exps(0, 0, NT) + exps(0, 1, NT) + cvts(0, NT)
    for dt in range(8):
        for h in range(2):
            b.append(salu("s_add_u32", sO, sC, h * 4096))
            for r in range(4):
                d = vt[4 * h + r]
                b.append(raw(f"buffer_load_ushort {d}, {vVo}, {K.SRD_V}, {sO} offen offset:{r * 256 + dt * 32}", "vload", d.regs(), vVo.regs() + K.SRD_V.regs() + sO.regs()))
        b.append(wait(vm=0))
        for r in range(4): b.append(valu("v_lshl_or_b32", fr[r], vt[2 * r + 1], 16, vt[2 * r]))
        for qt in range(NT): b.append(mfma(K.oacc(dt, qt, NT), fr, pfrag(0, qt), K.oacc(dt, qt, NT)))
        b.append(nop(7))
    for qt in range(NT): b.append(mfma(K.lacc(qt), K.ONES, pfrag(0, qt), K.lacc(qt)))
    b += [nop(7), salu("s_add_u32", sC, sC, 8192), salu("s_and_b32", sO, sC, 0x1ffff), scmp("s_cmp_lg_u32", sO, 0), branch("s_cbranch_scc1", f"{lbl}_s2")]
    o.append(Loop(b, reps=2))
    E(nop(7))
    E(branch("s_branch", f"{lbl}_norm"))
    return o

def wave_main(NT, cfg, lbl):
    loader = NT == 2
    prog = []
    E = prog.append
    E(salu("s_mov_b32", K.sWqOff, 0))
    for j in range(4):
        if j: E(salu("s_add_u32", K.sWqOff, K.sWqOff, 32 * 8192))
        for p, d in wq_pieces(wq_unit(j), cfg, ("wq", j % 5) if loader else ("wq", ("d", j & 7))):
            E(p); E(d)
        if j < 3:
            for qt in range(NT):
                for dj in range(2):
                    jj = 2 * j + dj
                    E(bload(K.xb(jj, qt), K.vX[qt], K.SRD_X, 0, jj * 64, cfg["x_flags"]))
    for i in range(64 * NT): E(valu("v_mov_b32", V(K.ACC + i), 0))
    for r in range(4): E(valu("v_mov_b32", K.ONES[r], 0x3f803f80))
    E(valu("v_add_u32", K.vW, wq_unit(0), K.vWb))
    prog += stamp(cfg, 1)
    E(wait_tag([("wq", 0) if loader else ("wq", ("d", 0))]))
    E(barrier())
    prog += stamp(cfg, 2)
    for f in range(NPRE(NT)):
        for h in range(2): E(wread(f, h))
    def late_tile(t):
        ops = tile_ops(cfg, NT)
        pre0 = set_wr(t, NT) + [salu("s_mov_b32", K.sKOff, (t + 1) * 8192), salu("s_mov_b32", K.sVOff, t * 8192)]
        return [(pre0 + ops[0][0], ops[0][1])] + ops[1:]
    if loader:
        early = kv_pieces(False, K0_OFF, 0, list(range(8)), cfg, "kv0")
        for t in range(4):
            early += kv_pieces(False, t * U, t + 1, list(range(8)), cfg, "kv0")
            early += kv_pieces(True, t * U + HU, t, list(range(8)), cfg, "kv0")
        for j in range(32):
            ex = []
            if 2 <= j < 26: ex = early[3 * (j - 2):3 * (j - 1)]
            if j >= 28: ex = late_tile(j - 24)
            prog += qproj_step(j, NT, cfg, False, extra_vm=ex, load_wq=j + 4 < 32, load_x=j + 6 < 32, last=j == 31)
    else:
        E(salu("s_mov_b32", K.sCnt, 0)); E(salu("s_mov_b32", K.sXOff, 0))
        E(salu("s_mov_b32", K.sWqRd, wq_unit(0)))
        E(salu("s_add_u32", K.sWqWr, K.sWqM0, wq_unit(4)))
        body = [label(f"{lbl}_qloop")]
        for j in range(8): body += qproj_step(j, NT, cfg, True, loopend=f"{lbl}_qloop" if j == 7 else None)
        prog.append(Loop(body, reps=3))
        for j in range(8):
            prog += qproj_step(j, NT, cfg, True, extra_vm=late_tile(j) if j >= 4 else [], load_wq=j + 28 < 32, load_x=j + 30 < 32, last=j == 7)
    prog += stamp(cfg, 3)
    E(salu("s_mov_b32", K.sScale[0], f32bits(QSCALE))); E(salu("s_mov_b32", K.sScale[1], f32bits(QSCALE)))
    for p in range(8 * NT):
        a = V(K.ACC + 8 * p, 8)
        for r in range(0, 8, 2): E(valu("v_pk_mul_f32", a[r:r + 2], a[r:r + 2], K.sScale))
        if p < 4 * NT:
            d = V(K.Q + 4 * p, 4)
            for r in range(4): E(valu("v_cvt_pk_bf16_f32", d[r], a[2 * r], a[2 * r + 1]))
        else:
            for r in range(4): E(valu("v_cvt_pk_bf16_f32", a[r], a[2 * r], a[2 * r + 1]))
            for r in range(4): E(accwr(A(K.Q1 + 4 * (p - 4 * NT) + r), a[r]))
    E(salu("s_mov_b32", K.sHead, 0))
    E(salu("s_mov_b32", K.sRd, 0))
    prog += set_wr(8, NT)
    E(salu("s_mov_b32", K.sKOff, 9 * 8192)); E(salu("s_mov_b32", K.sVOff, 8 * 8192))
    E(valu("v_add_u32", K.vK, K0_OFF, K.vKb))
    prog += stamp(cfg, 4)
    hb = [label(f"{lbl}_head")]
    hb += attn_pre(NT, cfg)
    hb += [wait(lgkm=0, vm=KV_WAIT(NT)), barrier()]
    hb += [valu("v_add_u32", K.vK, K.sRd, K.vKb), valu("v_add_u32", K.vV, K.sRd, K.vVb)]
    hb += [kread(0, s) for s in range(4)]
    hb += attn_max(NT)
    hb += attn_iter(0, NT, cfg, first=True)
    hb += [salu("s_mov_b32", K.sCnt, 0)]
    body = [label(f"{lbl}_aloop")] + attn_iter(1, NT, cfg) + attn_iter(0, NT, cfg, loopend=f"{lbl}_aloop")
    hb.append(Loop(body, reps=2))
    hb += attn_tail(NT, cfg, loader, lbl)
    hb += [scmp("s_cmp_eq_u32", K.sHead, 1), branch("s_cbranch_scc1", f"{lbl}_done")]
    hb += stamp(cfg, 5)
    hb += [salu("s_mov_b32", K.sHead, 1), salu("s_add_u32", K.sOOff, K.sOOff, 4096)]
    ra, rb = ring_advance_ops(NT)
    hb += ra + rb
    hb += [accrd(V(K.Q + i), A(K.Q1 + i)) for i in range(16 * NT)]
    hb += [branch("s_branch", f"{lbl}_head")]
    prog.append(Loop(hb, reps=2))
    E(label(f"{lbl}_done"))
    prog += stamp(cfg, 6)
    if cfg.get("stamps"):
        E(wait(vm=0)); prog += stamp(cfg, 7); prog += stamp_dump(cfg, 8, K.sWave, 0)
    E(raw("s_endpgm", "branch"))
    slow = slow_path(NT, cfg, lbl)
    return prog, slow

def gen_k1(cfg, warn=None):
    pro = []
    E = pro.append
    E(scmp("s_cmp_ge_u32", S(2), 256))
    E(branch("s_cbranch_scc1", "k1_exit"))
    pro += stamp(cfg, 0)
    E(sload(S(44, 8), S(0, 2), 0))
    E(sload(S(52, 8), S(0, 2), 40))
    E(sload(S(60, 2), S(0, 2), 96))
    if cfg.get("warm_code"):
        E(raw("s_getpc_b64 s[62:63]", "salu", ["s62", "s63"]))
        E(raw("k1_pc:", "label"))
        E(valu("v_lshlrev_b32", V(5), 7, V(0)))
        E(valu("v_add_u32", V(6), 0x8000, V(5)))
        E(valu("v_min_u32", V(5), "k1_exit-k1_pc", V(5)))
        E(valu("v_min_u32", V(6), "k1_exit-k1_pc", V(6)))
        E(raw("global_load_dword v21, v5, s[62:63]", "vload", ["v21"], ["v5", "s62", "s63"]))
        E(raw("global_load_dword v22, v6, s[62:63]", "vload", ["v22"], ["v6", "s62", "s63"]))
    E(valu("v_and_b32", K.vLane, 63, V(0)))
    E(valu("v_lshrrev_b32", K.t0, 6, V(0)))
    E(readfirstlane(K.sWave, K.t0))
    sBlk, sB, sHp = S(27), S(28), S(29)
    E(salu("s_bfe_u32", sBlk, S(2), (1 << 16) | 2))
    E(salu("s_lshr_b32", sB, S(2), 5))
    E(salu("s_and_b32", sHp, S(2), 3)); E(salu("s_lshl_b32", sHp, sHp, 2))
    E(salu("s_bfe_u32", K.sT, S(2), (2 << 16) | 3)); E(salu("s_add_u32", sHp, sHp, K.sT))
    l, t0, t1, t2, t3 = K.vLane, K.t0, K.t1, K.t2, K.t3
    E(valu("v_and_b32", t0, 15, l))
    E(valu("v_lshrrev_b32", t1, 4, l))
    E(salu("s_and_b32", K.sT, K.sWave, 1)); E(salu("s_lshl_b32", K.sT, K.sT, 1))
    E(salu("s_lshr_b32", K.sT2, K.sWave, 1)); E(salu("s_lshl_b32", K.sT2, K.sT2, 3))
    E(salu("s_add_u32", K.sT, K.sT, K.sT2)); E(salu("s_lshl_b32", K.sT, K.sT, 13))
    E(valu("v_lshrrev_b32", t2, 5, l)); E(valu("v_lshlrev_b32", t2, 15, t2))
    E(valu("v_and_b32", t3, 31, l)); E(valu("v_lshl_add_u32", t2, t3, 4, t2))
    E(valu("v_add_u32", K.vDWQ[0], K.sT, t2))
    E(valu("v_add_u32", K.vDWQ[1], 16 * 8192, K.vDWQ[0]))
    E(valu("v_add_u32", K.vDWQ[2], 8192, K.vDWQ[0]))
    E(valu("v_add_u32", K.vDWQ[3], 17 * 8192, K.vDWQ[0]))
    E(salu("s_mul_i32", K.sWqM0, K.sWave, 4096 + 64))
    E(salu("s_mul_i32", K.sT, K.sWave, 48 * 2048))
    E(valu("v_lshlrev_b32", t2, 11, t0)); E(valu("v_lshl_add_u32", t2, t1, 4, t2))
    E(valu("v_add_u32", K.vX[0], K.sT, t2))
    E(valu("v_add_u32", K.vX[1], 32768, K.vX[0])); E(valu("v_add_u32", K.vX[2], 65536, K.vX[0]))
    E(valu("v_lshrrev_b32", t2, 2, l)); E(valu("v_and_b32", t2, 7, t2))
    E(valu("v_lshlrev_b32", K.vWb, 11, t2))
    E(valu("v_lshrrev_b32", t3, 1, t2)); E(valu("v_lshl_add_u32", K.vWb, t3, 6, K.vWb))
    E(valu("v_and_b32", t3, 1, t2)); E(valu("v_lshl_add_u32", K.vWb, t3, 3, K.vWb))
    E(valu("v_lshrrev_b32", t3, 5, l)); E(valu("v_lshl_add_u32", K.vWb, t3, 10, K.vWb))
    E(valu("v_mul_u32_u24", K.vVb, 1056, t2)); E(valu("v_lshl_add_u32", K.vVb, t3, 8, K.vVb))
    E(valu("v_and_b32", t3, 3, l))
    E(valu("v_lshl_add_u32", K.vWb, t3, 4, K.vWb)); E(valu("v_lshl_add_u32", K.vVb, t3, 3, K.vVb))
    E(valu("v_and_b32", t2, 7, l)); E(valu("v_mul_u32_u24", K.vKb, 1056, t2))
    E(valu("v_lshrrev_b32", t2, 3, t0)); E(valu("v_lshl_add_u32", K.vKb, t2, 8, K.vKb))
    E(valu("v_lshl_add_u32", K.vKb, t1, 4, K.vKb))
    E(valu("v_lshlrev_b32", K.vDKV, 11, t1)); E(valu("v_lshl_add_u32", K.vDKV, t0, 4, K.vDKV))
    E(valu("v_lshlrev_b32", K.vO, 4, l))
    E(salu("s_lshl_b32", K.sT, K.sWave, 9)); E(valu("v_add_u32", K.vDK, K.sT, K.vDKV))
    E(salu("s_lshl_b32", K.sT, K.sWave, 8)); E(valu("v_add_u32", K.vDV, K.sT, K.vDKV))
    E(salu("s_mul_i32", K.sWvK, K.sWave, 2112))
    E(salu("s_mul_i32", K.sWvV, K.sWave, 1056)); E(salu("s_add_u32", K.sWvV, K.sWvV, HU))
    E(salu("s_mul_i32", K.sOOff, K.sWave, 3 * 131072)); E(salu("s_lshl_b32", K.sT, sHp, 13)); E(salu("s_add_u32", K.sOOff, K.sOOff, K.sT))
    E(wait(lgkm=0))
    E(scmp("s_cmp_eq_u32", sBlk, 0))
    E(salu("s_cselect_b64", S(4, 2), S(44, 2), S(52, 2)))
    E(salu("s_cselect_b64", S(12, 2), S(46, 2), S(54, 2)))
    E(salu("s_cselect_b64", S(16, 2), S(48, 2), S(56, 2)))
    E(salu("s_cselect_b64", S(8, 2), S(50, 2), S(58, 2)))
    E(salu("s_lshl_b32", K.sT, sHp, 9))
    E(salu("s_add_u32", S(8), S(8), K.sT)); E(salu("s_addc_u32", S(9), S(9), 0))
    E(salu("s_sub_u32", S(10), 1024 * 8192, K.sT)); E(salu("s_mov_b32", S(11), 0x00020000))
    E(salu("s_mul_i32", K.sT, sB, 360448))
    E(salu("s_add_u32", S(4), S(4), K.sT)); E(salu("s_addc_u32", S(5), S(5), 0))
    E(salu("s_mov_b32", S(6), 360448)); E(salu("s_mov_b32", S(7), 0x00020000))
    E(salu("s_lshl_b32", K.sT, sB, 4)); E(salu("s_add_u32", K.sT, K.sT, sHp)); E(salu("s_lshl_b32", K.sT, K.sT, 18))
    E(salu("s_add_u32", S(12), S(12), K.sT)); E(salu("s_addc_u32", S(13), S(13), 0))
    E(salu("s_mov_b32", S(14), 262144)); E(salu("s_mov_b32", S(15), 0x00020000))
    E(salu("s_add_u32", S(16), S(16), K.sT)); E(salu("s_addc_u32", S(17), S(17), 0))
    E(salu("s_mov_b32", S(18), 262144)); E(salu("s_mov_b32", S(19), 0x00020000))
    E(salu("s_mul_i32", K.sT, sBlk, 88)); E(salu("s_mul_i32", K.sT2, sB, 11)); E(salu("s_add_u32", K.sT, K.sT, K.sT2)); E(salu("s_lshl_b32", K.sT, K.sT, 17))
    E(salu("s_add_u32", S(20), S(60), K.sT)); E(salu("s_addc_u32", S(21), S(61), 0))
    E(salu("s_mov_b32", S(22), 11 * 131072)); E(salu("s_mov_b32", S(23), 0x00020000))
    E(scmp("s_cmp_eq_u32", K.sWave, 3))
    E(branch("s_cbranch_scc1", "k1_w3"))
    a, sa = wave_main(3, cfg, "k1a")
    b, sb = wave_main(2, cfg, "k1b")
    b = [label("k1_w3")] + b
    for _ in range(2):
        for p in (pro + a, pro + b, sa, sb):
            tr = flatten_trace(p); insert_waits(tr); check_hazards(tr, warn=warn)
    L = emit(flatten_static(pro + a)) + emit(flatten_static(b)) + ["k1_exit:", "    s_endpgm"] + emit(flatten_static(sa)) + emit(flatten_static(sb))
    return L
```

```python
import sys, json
sys.path.insert(0, "gen")
from asmlib import *
import k2
NAME = "concat_heads__mha_block_cached__gqa_block_cached__near_ridge"
HEADER = open(f"cdna_kernels/{NAME}.s.ref").read().split("; Override launch")[0]

def kd(name, vg=512, acc=256, sg=102):
    return [".p2align 6", f".amdhsa_kernel {name}", f"  .amdhsa_next_free_vgpr {vg}", f"  .amdhsa_next_free_sgpr {sg}", f"  .amdhsa_accum_offset {acc}",
            "  .amdhsa_group_segment_fixed_size 0", "  .amdhsa_kernarg_size 104", "  .amdhsa_user_sgpr_count 2",
            "  .amdhsa_user_sgpr_kernarg_segment_ptr 1", "  .amdhsa_system_sgpr_workgroup_id_x 1", ".end_amdhsa_kernel"]

def assemble(kernels):
    out = [HEADER.rstrip()]
    for n, _, lds in kernels:
        if n == NAME + "_kernel": out.append(f"; @launch grid=(256,1,1) block=(256,1,1) lds={lds}"); out.append("; fused ; nstamps0=9")
        else: out.append(f"; @launch kernel={n} grid=(256,1,1) block=(256,1,1) lds={lds}")
    body = []
    for n, lines, _ in kernels:
        body += [f".globl {n}", ".p2align 12" if n == NAME + "_kernel" else ".p2align 8", f".type {n},@function", f"{n}:"] + lines
    macros, body = compact(body)
    out += ['.amdgcn_target "amdgcn-amd-amdhsa--gfx950"'] + macros + [".text"] + body
    out += ['.section .rodata,"a"']
    for n, _, _ in kernels: out += kd(n)
    return "\n".join(out) + "\n"

DEF = dict(wo_flags="", o_ld_flags="", out_flags="", warm_code=True, kv_flags="nt", wq_flags="", x_flags="", o_st_flags="")
if __name__ == "__main__":
    cfg = dict(DEF)
    which = sys.argv[1]; outp = sys.argv[2]
    for kv in sys.argv[3:]:
        k, v = kv.split("=", 1)
        cfg[k] = json.loads(v) if v and v[0] in "0123456789tf[" else v
    ks = []
    if "1" in which:
        import k1
        ks.append((k1.KNAME1, k1.gen_k1(cfg, warn=lambda s: print("k1:", s)), 163840))
    if "2" in which:
        ks.append((k2.KNAME2, k2.gen_k2(cfg, warn=lambda s: print("k2:", s)), 163840))
    if "f" in which:
        import fused
        cfg.setdefault("x_st_flags", "sc1")
        if cfg["o_st_flags"] == "": cfg["o_st_flags"] = "sc1"
        if cfg["o_ld_flags"] == "": cfg["o_ld_flags"] = "sc1"
        ks.append((fused.KNAME, fused.gen(cfg, warn=lambda s: print("f:", s)), 163840))
    open(outp, "w").write(assemble(ks))
```
